```python
import torch

def _softmax(x, axis=-1):
    return torch.softmax(x, dim=axis)
def _gelu(x):
    return torch.nn.functional.gelu(x, approximate="tanh")
def _silu(x):
    return torch.nn.functional.silu(x)
def _sigmoid(x):
    return torch.sigmoid(x)
def _layernorm(x, axis=-1, eps=1e-5):
    m = x.mean(dim=axis, keepdim=True)
    v = x.var(dim=axis, keepdim=True, unbiased=False)
    return (x - m) / torch.sqrt(v + eps)
def _scatter_add(tgt, idx, src, axis=0):
    return tgt.clone().index_add_(axis, idx, src)
def _segment_sum(src, seg, n):
    out = torch.zeros((n,) + src.shape[1:], dtype=src.dtype)
    return out.index_add_(0, seg, src)
def _pad(x, pw):
    flat = tuple(v for pair in reversed(pw) for v in pair)
    return torch.nn.functional.pad(x, flat)

kernel_name = 'standalone__mha_block_cached__near_ridge'

def setup_inputs():

    _w = (lambda a: (lambda t: t.to(torch.bfloat16) if t.is_floating_point() else t)(torch.as_tensor(a)))
    B, Sq, D = 8, 192, 512
    H, Sk, Dh = 32, 512, 128
    return {
        "x": _w((lambda *s: torch.randn(*s, dtype=torch.bfloat16) * 0.8)(B, Sq, D)),
        "k_cache": _w((lambda *s: torch.randn(*s, dtype=torch.bfloat16) * 0.8)(B, H, Sk, Dh)),
        "v_cache": _w((lambda *s: torch.randn(*s, dtype=torch.bfloat16) * 0.05)(B, H, Sk, Dh)),
        "wq": _w((lambda *s: torch.randn(*s, dtype=torch.bfloat16) * 0.8)(D, H * Dh) * (D ** -0.5)),
        "wo": _w((lambda *s: torch.randn(*s, dtype=torch.bfloat16) * 0.05)(H * Dh, D) * ((H * Dh) ** -0.5)),
    }

def reference(x, k_cache, v_cache, wq, wo):
    B, Sq, D = x.shape
    H, Dh = 32, 128
    q = (lambda x, *d: x.permute(*d))((x @ wq).reshape(B, Sq, H, Dh), 0, 2, 1, 3)
    scores = torch.einsum("bhqd,bhkd->bhqk", q, k_cache) * (Dh ** -0.5)
    p = _softmax(scores, axis=-1)
    o = torch.einsum("bhqk,bhkd->bhqd", p, v_cache)
    return (lambda x, *d: x.permute(*d))(o, 0, 2, 1, 3).reshape(B, Sq, H * Dh) @ wo
```

```python
import re
from collections import defaultdict

def R(p, a, n=1): return [f"{p}{i}" for i in range(a, a + n)]
def rng(p, a, n): return f"{p}{a}" if n == 1 else f"{p}[{a}:{a+n-1}]"

class Op:
    __slots__ = ("text", "kind", "rd", "wr", "c", "lds_rd", "lds_wr", "need_vm", "need_lgkm", "earliest", "latest", "after",
                 "idx", "gap", "preds", "succs", "dl", "tag", "chain", "sub", "waitall")
    def __init__(s, text, kind, rd=(), wr=(), c=(), lds_rd=(), lds_wr=(), earliest=None, latest=None, after=(), tag="", chain=None, sub=None):
        s.text, s.kind, s.rd, s.wr, s.c = text, kind, list(rd), list(wr), list(c)
        s.lds_rd, s.lds_wr = list(lds_rd), list(lds_wr)
        s.need_vm, s.need_lgkm = [], []
        s.earliest, s.latest, s.after, s.tag, s.chain, s.sub = earliest, latest, list(after), tag, chain, sub
        s.gap = None; s.waitall = False
    def __repr__(s): return f"<{s.kind}:{s.text}>"

VALU = ("valu", "trans", "perm")
VM = ("dma", "load", "store")
COST = {"valu": 4, "trans": 8, "perm": 8, "ds": 4, "dsw": 4, "dma": 4, "load": 4, "store": 4}
MEM = ("ds", "dsw", "dma", "load", "store")
MEM2 = 2
SCAL = ("salu", "bar", "wait")

def lat(p, s, typ):
    if typ == "raw":
        if p.kind == "mfma":
            if s.kind == "mfma": return 0
            return 4
        if p.kind == "ds": return p.sub or 6
        if p.kind == "load": return p.sub or 30
        if p.kind == "dma": return 0
        if p.kind == "salu" and s.kind in VM: return 1
        if p.kind in VALU and s.kind in ("ds", "dsw", "dma", "load", "store"): return 1
        if p.kind in VALU and s.kind == "perm": return 1
        if p.kind == "trans" and s.kind == "valu": return 1
        if p.kind in VALU and s.kind == "mfma": return 1
        return 0
    if typ == "war":
        if p.kind == "store" : return 1
        if p.kind in VM and s.kind == "salu": return 1
        if p.kind == "mfma" and s.kind in VALU: return 0
        return 0
    if typ == "ldswar": return 6
    if typ == "waw":
        if p.kind == "mfma" and s.kind != "mfma": return 4
        return 0
    return 0

def build_dag(ops):
    lastw, readers = {}, defaultdict(list)
    lw_l, rd_l = {}, defaultdict(list)
    chains = {}
    for i, o in enumerate(ops):
        o.idx = i; o.preds = {}; o.succs = {}
    inside = set(ops)
    def edge(p, s, l):
        if p is s or p not in inside: return
        if s.preds.get(p, -1) < l: s.preds[p] = l; p.succs[s] = l
    for o in ops:
        for r in o.rd + o.c:
            if r in lastw: edge(lastw[r], o, lat(lastw[r], o, "raw"))
        for r in o.wr:
            if r in lastw: edge(lastw[r], o, lat(lastw[r], o, "waw"))
            for q in readers[r]: edge(q, o, lat(q, o, "war"))
        for r in o.lds_rd:
            if r in lw_l: edge(lw_l[r], o, 0)
        for r in o.lds_wr:
            if r in lw_l: edge(lw_l[r], o, 0)
            for q in rd_l[r]: edge(q, o, lat(q, o, "ldswar"))
        for p in o.after: edge(p, o, 0)
        for p in o.need_vm: edge(p, o, 0)
        for p in o.need_lgkm: edge(p, o, 5)
        if o.chain is not None:
            if o.chain in chains: edge(chains[o.chain], o, 0)
            chains[o.chain] = o
        for r in o.rd + o.c: readers[r].append(o)
        for r in o.wr: lastw[r] = o; readers[r] = []
        for r in o.lds_rd: rd_l[r].append(o)
        for r in o.lds_wr: lw_l[r] = o; rd_l[r] = []

def schedule(ops, verbose=False):
    build_dag(ops)
    M = [o for o in ops if o.kind == "mfma"]
    for g, m in enumerate(M): m.gap = g
    n = len(M)
    F = [o for o in ops if o.kind != "mfma"]
    INF = n + 1000
    hard = {}
    for o in reversed(ops):
        if o.kind == "mfma": continue
        d, h = INF, INF
        for s, l in o.succs.items():
            if s.kind == "mfma": d = min(d, s.gap - 1 - l); h = min(h, s.gap - 1)
            else: d = min(d, s.dl - l); h = min(h, hard[s])
        if o.latest is not None: d = min(d, o.latest)
        o.dl = min(d, h); hard[o] = h
    placed = set(); gaps = defaultdict(list); pending = list(F)
    def ready(o, g, strict=True):
        for p, l in o.preds.items():
            if p.gap is None: return False
            if p.kind == "mfma":
                if p.gap + (l if strict else 0) > g: return False
            elif p.gap + (l if strict else 0) > g: return False
        return True
    for g in range(-1, n):
        last = g == n - 1
        used = 0; scal = 0; nv = 0; nmem = 0
        while True:
            best = None
            for o in pending:
                forced = hard[o] <= g or last
                if not forced and o.earliest is not None and o.earliest > g: continue
                if not ready(o, g, strict=not forced): continue
                urgent = forced or o.dl <= g
                if g >= 0 and not urgent:
                    if o.kind in SCAL:
                        if scal >= 1: continue
                    else:
                        c = COST[o.kind]
                        if used + c > 8: continue
                        if o.kind == "valu" and nv >= 1 and o.dl > g + 3: continue
                        if o.kind in MEM and nmem >= 1 and o.dl > g + MEM2: continue
                elif g < 0 and not urgent and o.earliest is None and False: continue
                key = (0 if forced else 1, o.dl, o.idx)
                if best is None or key < best[0]: best = (key, o)
            if best is None: break
            o = best[1]
            if g < 0 and not (hard[o] <= g or o.dl <= g or (o.earliest is not None and o.earliest < 0)):
                cand = [x for x in pending if (hard[x] <= g or x.dl <= g or (x.earliest is not None and x.earliest < 0)) and ready(x, g, strict=False)]
                if not cand: break
                o = min(cand, key=lambda x: x.idx)
            o.gap = g; gaps[g].append(o); pending.remove(o)
            if o.kind in SCAL: scal += 1
            else:
                used += COST[o.kind]
                if o.kind == "valu": nv += 1
                if o.kind in MEM: nmem += 1
    assert not pending, pending[:5]
    out = []
    cls = lambda o: 0 if o.kind in SCAL else (1 if o.kind in ("ds", "dsw", "dma", "load", "store") else 2)
    for g in range(-1, n):
        if g >= 0: out.append(M[g])
        L = gaps[g]
        if g < 0 or g == n - 1:
            L = sorted(L, key=lambda o: o.idx) if g < 0 else L
            out += L; continue
        rem = list(L); S = set(L)
        while rem:
            c = [o for o in rem if not any(p in S and p in rem for p in o.preds)]
            o = min(c, key=lambda o: (cls(o), o.idx)); out.append(o); rem.remove(o)
    pos = {o: i for i, o in enumerate(out)}
    for o in ops:
        for p in o.preds: assert pos[p] < pos[o], (p, o)
    return out

def insert_waits(seq, hoist=True):
    out = []
    vm, lg = [], []
    vmdone = lgdone = -1
    ordv, ordl = {}, {}
    regw = {}
    ldsw = {}; ldsr = defaultdict(list)
    lastm = -1; mpos = []
    for o in seq:
        nv, nl = -1, -1
        def need(p):
            nonlocal nv, nl
            if p in ordv: nv = max(nv, ordv[p])
            elif p in ordl: nl = max(nl, ordl[p])
        for r in o.rd + o.c + o.wr:
            if r in regw: need(regw[r])
        for r in o.lds_rd:
            if r in ldsw: need(ldsw[r])
        for r in o.lds_wr:
            for q in ldsr[r]: need(q)
            if r in ldsw and ldsw[r].kind != o.kind: need(ldsw[r])
        for p in o.need_vm + o.need_lgkm: need(p)
        if nv > vmdone or nl > lgdone:
            at = len(out)
            if hoist and lastm >= 0 and o.kind not in ("bar",):
                h = lastm + 1
                ok = (nv <= vmdone or vm[nv] < h) and (nl <= lgdone or lg[nl] < h)
                ok = ok and not any(x.kind in ("label", "branch", "bar") for x in out[h:])
                if ok: at = h
            parts = []
            if nv > vmdone:
                cnt = sum(1 for x in vm[nv + 1:] if x < at); cnt = min(cnt, 63)
                issued = sum(1 for x in vm if x < at)
                vmdone = issued - cnt - 1; parts.append(f"vmcnt({cnt})")
            if nl > lgdone:
                if len(mpos) > 9:
                    old = mpos[-9]
                    while nl + 1 < len(lg) and lg[nl + 1] < old: nl += 1
                cnt = sum(1 for x in lg[nl + 1:] if x < at); cnt = min(cnt, 15)
                issued = sum(1 for x in lg if x < at)
                lgdone = issued - cnt - 1; parts.append(f"lgkmcnt({cnt})")
            w = Op("s_waitcnt " + " ".join(parts), "wait")
            if at < len(out) and out[at].kind == "wait" and out[at].tag == "auto":
                old = dict(re.findall(r"(\w+)\((\d+)\)", out[at].text)); new = dict(re.findall(r"(\w+)\((\d+)\)", w.text))
                for k, v in new.items(): old[k] = str(min(int(v), int(old.get(k, 99))))
                out[at].text = "s_waitcnt " + " ".join(f"{k}({v})" for k, v in old.items())
            else:
                w.tag = "auto"; out.insert(at, w)
                vm = [x + (x >= at) for x in vm]; lg = [x + (x >= at) for x in lg]
        pos = len(out); out.append(o)
        if o.waitall: vmdone = len(vm) - 1; lgdone = len(lg) - 1
        isasync = False
        if o.kind in VM: ordv[o] = len(vm); vm.append(pos); isasync = True
        elif o.kind in ("ds", "dsw"): ordl[o] = len(lg); lg.append(pos); isasync = True
        for r in o.wr:
            if isasync: regw[r] = o
            else: regw.pop(r, None)
        for r in o.lds_wr: ldsw[r] = o; ldsr[r] = []
        for r in o.lds_rd: ldsr[r].append(o)
        if o.kind == "mfma": lastm = pos; mpos.append(pos)
    return out

def states(o):
    if o.kind in ("label", "comment"): return 0
    m = re.match(r"s_nop (\d+)", o.text)
    return int(m.group(1)) + 1 if m else 1

def insert_nops(seq, log=None):
    out = []; nn = 0
    W = 14
    for o in seq:
        if o.kind in ("label", "comment"): out.append(o); continue
        need = 0; d = 0
        rd = set(o.rd); cc = set(o.c); wr = set(o.wr)
        for p in reversed(out[-40:]):
            if d >= W: break
            pw = set(p.wr); req = 0
            if p.kind == "mfma":
                if o.kind == "mfma":
                    if pw & rd: req = 8
                    if pw & cc and p.wr != o.c: req = max(req, 6)
                    if pw & wr and p.wr != o.c: req = max(req, 8)
                else:
                    if pw & (rd | wr): req = 8
                    if o.kind in VALU and set(p.c) & wr: req = max(req, 3)
            elif p.kind in VALU:
                vw = {r for r in pw if r[0] in "va" and r != "vcc"}; sw = pw - vw
                if o.kind == "mfma" and vw & (rd | cc): req = 2
                if o.kind == "perm" and vw & rd: req = 2
                if o.sub == "dpp" and vw & rd: req = 2
                if o.sub == "rfl" and vw & rd: req = max(req, 1)
                if p.kind == "trans" and o.kind in ("valu", "perm") and vw & rd: req = max(req, 1)
                if sw & rd:
                    req = max(req, 5 if o.kind in VM else (2 if o.kind in VALU else 3))
            elif p.kind == "salu":
                if "m0" in pw and o.kind == "dma": req = 1
            elif p.kind == "store":
                if set(p.rd) & wr and o.kind != "salu": req = 2
            need = max(need, req - d)
            d += states(p)
        if need > 0:
            out.append(Op(f"s_nop {need-1}", "salu", tag="hz")); nn += need
            if log is not None: log.append((need, o.text))
        out.append(o)
    return out, nn

def estimate(seq):
    tot = 0; cur = None; res = []
    def close(c):
        if c is None: return 0
        body = c["body"] + 4 * max(0, c["scal"] - 1) + c["pen"]
        return max(16, 8 + body)
    for o in seq:
        if o.kind in ("label", "comment"): continue
        if o.kind == "mfma":
            tot += close(cur); cur = dict(body=0, scal=0, pen=0, lastv=False, nv=0); continue
        if cur is None: tot += 4 * states(o); continue
        if o.kind in SCAL or o.kind == "branch":
            if cur["body"]: cur["body"] += 4 * states(o)
            else: cur["scal"] += states(o)
        else:
            cur["body"] += COST[o.kind]
            if o.kind not in VALU and cur["lastv"]: cur["pen"] += 8
            if o.kind == "valu":
                cur["nv"] += 1
                if cur["nv"] == 2: cur["pen"] += 2
            cur["lastv"] = o.kind in VALU
    return tot + close(cur)
```

```python
import sys, heapq, struct, json
from sched import *

KN = "standalone__mha_block_cached__near_ridge_kernel"
fbits = lambda x: struct.unpack("<I", struct.pack("<f", x))[0]

ACC, LS, QF, SS, PP, NM, ONES = 8, 104, 116, 164, 188, 200, 212
KA, VA, KD, VD, WOA, WOD = 216, 220, 228, 230, 232, 244
VL16 = 248
WQA, XA, XD, WQD = 188, 196, 200, 204
T0 = 0
acc = lambda t, T: ACC + (t * 8 + T) * 4
sS = lambda t, kt: SS + (t * 2 + kt) * 4
sB, sH, sW, sROT = 20, 21, 22, 23
RX, RWQ, RK, RV, RWO, ROW, ROUT, RFL = 24, 28, 32, 36, 40, 44, 48, 52
XS, WS = 56, 64
sW2K, sW4K, sKO, sVO, sWO, sXO, sTAG, sSC, sT1, sT2, sT3 = 72, 73, 76, 77, 78, 79, 80, 81, 82, 83, 84
sOST, sOLD, sFST, sFLD = 86, 87, 88, 89
STAMP = 90
KBASE, CBASE, VBASE, WQBASE, XBASE = 0, 65536, 98304, 40960, 90112
kslot = lambda j: KBASE + (j & 7) * 8192
vslot = lambda j: ((j + 5) & 7) * 8192
wqslot = lambda s: ((s + 1) % 3) * 16384
xslot = lambda n: ((n + 1) % 6) * 8192
blocks = lambda a, n: [f"L{b}" for b in range(a // 8192, (a + n - 1) // 8192 + 1)]
FLAG_OFF = 16 << 20
GEN_OFF = FLAG_OFF + (1 << 16)
STAMP_OFF = 255 << 20

def mfma(d, a_, b_, c):
    ct = "0" if c is None else rng(c[0], c[1], 4)
    return Op(f"v_mfma_f32_16x16x32_bf16 {rng(d[0], d[1], 4)}, {rng(a_[0], a_[1], 4)}, {rng(b_[0], b_[1], 4)}, {ct}", "mfma",
              rd=R(*a_, 4) + R(*b_, 4), wr=R(*d, 4), c=[] if c is None else R(*c, 4))
def V(text, wr, rd, kind="valu", **k): return Op(text, kind, rd=rd, wr=wr, **k)
def SA(text, wr, rd=(), **k): return Op(text, "salu", rd=rd, wr=list(wr) + ["scc"] if k.pop("scc", False) else wr, **k)
def srd(r): return R("s", r, 4)

class Gen:
    def __init__(s, **cfg):
        s.c = dict(xpace=12, xlead=0, bpos=36, mid=100, stamps=False, local=False, dump=None, kvnt=True, attpace=1.5, npf=0,
                   wont=False, wqnt=False)
        s.c.update(cfg)
    def prologue(s):
        o = []; a = o.append
        def sa(t, wr, rd=()): a(Op(t, "salu", rd=rd, wr=wr))
        def va(t, wr, rd=(), **k): a(Op(t, "valu", rd=rd, wr=wr, **k))
        sa("s_cmp_ge_u32 s2, 256", ["scc"]); a(Op("s_cbranch_scc1 L_end", "branch"))
        sa("s_load_dwordx16 s[4:19], s[0:1], 0", [])
        if s.c["stamps"]: sa(f"s_memrealtime s[{STAMP}:{STAMP+1}]", [])
        va("v_lshrrev_b32 v1, 6, v0", ["v1"]); va("v_and_b32 v0, 63, v0", ["v0"])
        sa(f"s_and_b32 s{sB}, s2, 7", []); sa(f"s_lshr_b32 s{sH}, s2, 3", [])
        va(f"v_readfirstlane_b32 s{sW}, v1", [f"s{sW}"], ["v1"], sub="rfl")
        sa(f"s_add_u32 s{sROT}, s{sB}, s{sH}", [])
        va("v_lshrrev_b32 v2, 4, v0", ["v2"]); va("v_and_b32 v3, 15, v0", ["v3"])
        va("v_lshrrev_b32 v4, 3, v0", ["v4"]); va("v_and_b32 v5, 7, v0", ["v5"])
        va("v_lshl_add_u32 v6, v1, 4, v2", ["v6"]); va("v_lshlrev_b32 v6, 13, v6", ["v6"])
        va("v_lshlrev_b32 v7, 1, v2", ["v7"]); va("v_xor_b32 v7, v7, v3", ["v7"]); va(f"v_lshl_add_u32 v{WQD}, v7, 4, v6", [f"v{WQD}"])
        va(f"v_add_u32 v{WQD+1}, {4*8192-1024}, v{WQD}", [f"v{WQD+1}"])
        va(f"v_xor_b32 v{WQD+2}, 128, v{WQD}", [f"v{WQD+2}"]); va(f"v_add_u32 v{WQD+2}, {2*(4*8192-1024)}, v{WQD+2}", [f"v{WQD+2}"])
        va(f"v_add_u32 v{WQD+3}, {4*8192-1024}, v{WQD+2}", [f"v{WQD+3}"])
        va("v_mul_u32_u24 v6, 48, v1", ["v6"]); va("v_add_u32 v6, v6, v4", ["v6"]); va("v_lshlrev_b32 v6, 10, v6", ["v6"])
        va("v_xor_b32 v7, v5, v2", ["v7"]); va(f"v_lshl_add_u32 v{XD}, v7, 4, v6", [f"v{XD}"])
        va(f"v_xor_b32 v{XD+1}, 64, v{XD}", [f"v{XD+1}"]); va(f"v_add_u32 v{XD+1}, {8192-1024}, v{XD+1}", [f"v{XD+1}"])
        sa(f"s_lshl_b32 s{sW2K}, s{sW}, 11", [], [f"s{sW}"]); sa(f"s_lshl_b32 s{sW4K}, s{sW}, 12", [])
        for k in range(3):
            sa(f"s_add_u32 s{sT1}, s{sROT}, {k}", []); sa(f"s_and_b32 s{sT1}, s{sT1}, 7", [])
            sa(f"s_lshl_b32 s{XS+k}, s{sT1}, 7", []); sa(f"s_lshl_b32 s{WS+k}, s{sT1}, 19", [])
        sa(f"s_lshl_b32 s{sT1}, s{sH}, 8", []); sa(f"s_mul_i32 s{sT2}, s{sB}, 196608", [])
        sa(f"s_lshl_b32 s{sT3}, s{sB}, 5", []); sa(f"s_add_u32 s{sT3}, s{sT3}, s{sH}", []); sa(f"s_lshl_b32 s{sT3}, s{sT3}, 17", [])
        for r in (RX, RWQ, RK, RV, RWO, ROW, ROUT, RFL): sa(f"s_mov_b32 s{r+3}, 0x20000", [])
        sa(f"s_mov_b32 s{RX+2}, 196608", []); sa(f"s_sub_u32 s{RWQ+2}, 0x400000, s{sT1}", [])
        sa(f"s_mov_b32 s{RK+2}, 0x20000", []); sa(f"s_mov_b32 s{RV+2}, 0x20000", [])
        a(Op("s_waitcnt lgkmcnt(0)", "wait"))
        def base(r, p, off):
            sa(f"s_add_u32 s{r}, s{p}, {off}", [f"s{r}"]); sa(f"s_addc_u32 s{r+1}, s{p+1}, 0", [f"s{r+1}"]); sa(f"s_and_b32 s{r+1}, s{r+1}, 0xffff", [f"s{r+1}"])
        base(RWQ, 10, f"s{sT1}"); base(RX, 4, f"s{sT2}"); base(RK, 6, f"s{sT3}"); base(RV, 8, f"s{sT3}")
        va("v_lshl_add_u32 v6, v1, 3, v2", ["v6"])
        va("v_and_b32 v7, 15, v6", ["v7"]); va("v_xor_b32 v7, v7, v3", ["v7"]); va("v_lshlrev_b32 v6, 8, v6", ["v6"])
        va(f"v_lshl_add_u32 v{KD}, v7, 4, v6", [f"v{KD}"]); va(f"v_xor_b32 v{KD+1}, 64, v{KD}", [f"v{KD+1}"])
        va("v_lshlrev_b32 v7, 1, v2", ["v7"]); va("v_xor_b32 v7, v7, v3", ["v7"])
        va(f"v_lshl_add_u32 v{VD}, v7, 4, v6", [f"v{VD}"]); va(f"v_xor_b32 v{VD+1}, 128, v{VD}", [f"v{VD+1}"])
        return o
    def prologue2(s):
        o = []; a = o.append
        def sa(t, wr=(), rd=()): a(Op(t, "salu", rd=rd, wr=wr))
        def va(t, wr, rd=(), **k): a(Op(t, "valu", rd=rd, wr=wr, **k))
        def base(r, p, off):
            sa(f"s_add_u32 s{r}, s{p}, {off}"); sa(f"s_addc_u32 s{r+1}, s{p+1}, 0"); sa(f"s_and_b32 s{r+1}, s{r+1}, 0xffff")
        sa(f"s_lshl_b32 s{sT1}, s{sB}, 7"); sa(f"s_add_u32 s{sT1}, s{sT1}, {GEN_OFF}")
        sa(f"s_load_dword s{sTAG}, s[18:19], s{sT1}")
        for k in range(3, 8):
            sa(f"s_add_u32 s{sT1}, s{sROT}, {k}"); sa(f"s_and_b32 s{sT1}, s{sT1}, 7")
            sa(f"s_lshl_b32 s{XS+k}, s{sT1}, 7"); sa(f"s_lshl_b32 s{WS+k}, s{sT1}, 19")
        sa(f"s_and_b32 s{sT1}, s{sH}, 7"); sa(f"s_lshl_b32 s{sT1}, s{sT1}, 7")
        base(RWO, 12, f"s{sT1}"); sa(f"s_sub_u32 s{RWO+2}, 0x400000, s{sT1}")
        sa(f"s_lshr_b32 s{sT2}, s{sH}, 3")
        sa(f"s_lshl_b32 s{sT3}, s{sB}, 2"); sa(f"s_add_u32 s{sT3}, s{sT3}, s{sT2}"); sa(f"s_mul_i32 s{sT3}, s{sT3}, {48*1024}")
        sa(f"s_add_u32 s{sT3}, s{sT3}, s{sT1}"); base(ROUT, 14, f"s{sT3}"); sa(f"s_sub_u32 s{ROUT+2}, {8*192*1024}, s{sT3}")
        sa(f"s_mul_i32 s{sT3}, s{sB}, {128*12288}"); base(ROW, 18, f"s{sT3}"); sa(f"s_mov_b32 s{ROW+2}, {128*12288}")
        base(RFL, 18, FLAG_OFF); sa(f"s_mov_b32 s{RFL+2}, 0x20000")
        sa(f"s_lshl_b32 s{sOST}, s{sW}, 5"); sa(f"s_add_u32 s{sOST}, s{sOST}, s{sH}"); sa(f"s_mul_i32 s{sOST}, s{sOST}, 12288")
        sa(f"s_lshl_b32 s{sOLD}, s{sT2}, 2"); sa(f"s_add_u32 s{sOLD}, s{sOLD}, s{sW}"); sa(f"s_mul_i32 s{sOLD}, s{sOLD}, {8*12288}")
        sa(f"s_lshl_b32 s{sFST}, s{sB}, 2"); sa(f"s_add_u32 s{sFLD}, s{sFST}, s{sT2}"); sa(f"s_add_u32 s{sFST}, s{sFST}, s{sW}")
        sa(f"s_lshl_b32 s{sFST}, s{sFST}, 2"); sa(f"s_add_u32 s{sFST}, s{sFST}, s{sT2}"); sa(f"s_lshl_b32 s{sFST}, s{sFST}, 7")
        sa(f"s_lshr_b32 s{sT1}, s{sT1}, 5"); sa(f"s_add_u32 s{sFST}, s{sFST}, s{sT1}")
        sa(f"s_lshl_b32 s{sFLD}, s{sFLD}, 2"); sa(f"s_add_u32 s{sFLD}, s{sFLD}, s{sW}"); sa(f"s_lshl_b32 s{sFLD}, s{sFLD}, 7")
        sa(f"s_mov_b32 s{sSC}, {hex(fbits(1.4426950408889634 * 128 ** -0.5))}")
        va("v_bfe_u32 v6, v0, 2, 2", ["v6"]); va("v_and_b32 v7, 3, v0", ["v7"]); va("v_lshlrev_b32 v7, 3, v7", ["v7"])
        va(f"v_lshlrev_b32 v{VL16}, 4, v0", [f"v{VL16}"])
        t = 249; u = 250
        va(f"v_and_b32 v{t}, 1, v2", [f"v{t}"]); va(f"v_lshl_add_u32 v{t}, v{t}, 2, v6", [f"v{t}"])
        va(f"v_lshl_add_u32 v{t}, v{t}, 5, v7", [f"v{t}"])
        va(f"v_lshl_add_u32 v{u}, v2, 3, v6", [f"v{u}"]); va(f"v_lshl_add_u32 v{WQA}, v{u}, 8, v{t}", [f"v{WQA}"])
        va(f"v_add_u32 v{WQA}, {WQBASE}, v{WQA}", [f"v{WQA}"])
        va(f"v_lshl_add_u32 v{u}, v2, 2, v6", [f"v{u}"]); va(f"v_lshl_add_u32 v{VA}, v{u}, 8, v{t}", [f"v{VA}"])
        va(f"v_add_u32 v{VA}, {VBASE}, v{VA}", [f"v{VA}"])
        for T in range(1, 8):
            va(f"v_xor_b32 v{WQA+T}, {T*32}, v{WQA}", [f"v{WQA+T}"]); va(f"v_xor_b32 v{VA+T}, {T*32}, v{VA}", [f"v{VA+T}"])
        va(f"v_bfe_u32 v{t}, v{u}, 1, 2", [f"v{t}"]); va(f"v_xor_b32 v{t}, v{t}, v1", [f"v{t}"]); va(f"v_lshl_add_u32 v{t}, v{t}, 5, v7", [f"v{t}"])
        va(f"v_lshl_add_u32 v{t}, v{u}, 7, v{t}", [f"v{t}"]); va(f"v_lshl_add_u32 v{WOA}, v1, 12, v{t}", [f"v{WOA}"])
        va(f"v_add_u32 v{WOA}, {CBASE}, v{WOA}", [f"v{WOA}"])
        for T in range(1, 4): va(f"v_xor_b32 v{WOA+T}, {T*32}, v{WOA}", [f"v{WOA+T}"])
        va(f"v_lshl_add_u32 v{t}, v1, 10, v4", [f"v{t}"]); va(f"v_lshlrev_b32 v{t}, 10, v{t}", [f"v{t}"])
        va(f"v_lshlrev_b32 v{u}, 1, v2", [f"v{u}"]); va(f"v_xor_b32 v{u}, v{u}, v5", [f"v{u}"]); va(f"v_lshl_add_u32 v{WOD}, v{u}, 4, v{t}", [f"v{WOD}"])
        for i in range(1, 4): va(f"v_add_u32 v{WOD+i}, {i*(8192-1024)}, v{WOD}", [f"v{WOD+i}"])
        va(f"v_lshrrev_b32 v{t}, 1, v3", [f"v{t}"]); va(f"v_xor_b32 v{t}, v{t}, v2", [f"v{t}"]); va(f"v_lshlrev_b32 v{t}, 4, v{t}", [f"v{t}"])
        va(f"v_lshl_add_u32 v{t}, v3, 7, v{t}", [f"v{t}"]); va(f"v_lshl_add_u32 v{XA}, v1, 11, v{t}", [f"v{XA}"])
        va(f"v_add_u32 v{XA}, {XBASE}, v{XA}", [f"v{XA}"]); va(f"v_xor_b32 v{XA+1}, 64, v{XA}", [f"v{XA+1}"])
        va(f"v_and_b32 v{t}, 1, v2", [f"v{t}"]); va(f"v_lshrrev_b32 v{u}, 1, v2", [f"v{u}"]); va(f"v_lshl_add_u32 v{t}, v{t}, 1, v{u}", [f"v{t}"])
        va(f"v_xor_b32 v{t}, v{t}, v3", [f"v{t}"]); va(f"v_lshlrev_b32 v{t}, 4, v{t}", [f"v{t}"]); va(f"v_lshl_add_u32 v{KA}, v3, 8, v{t}", [f"v{KA}"])
        for d in range(1, 4): va(f"v_xor_b32 v{KA+d}, {d*64}, v{KA}", [f"v{KA+d}"])
        for i in range(4): va(f"v_mov_b32 v{ONES+i}, 0x3f803f80", [f"v{ONES+i}"])
        va("v_lshlrev_b32 v251, 10, v3", ["v251"]); va("v_lshl_add_u32 v251, v1, 5, v251", ["v251"]); va("v_lshl_add_u32 v251, v2, 3, v251", ["v251"])
        a(Op("s_waitcnt lgkmcnt(0)", "wait"))
        sa(f"s_add_u32 s{sTAG}, s{sTAG}, 1")
        return o
    def dma(s, S, m0base, ldsaddr, soff_ops, sreg, rsrc, voffs, nt, lds, after=(), earliest=None):
        ops = []
        m = Op(f"s_add_u32 m0, s{m0base}, {ldsaddr}", "salu", wr=["m0"], earliest=None if earliest is None else earliest - 1); S.append(m)
        for t_, wr in soff_ops: S.append(Op(t_, "salu", wr=wr, earliest=None if earliest is None else earliest - 2))
        for i, v in enumerate(voffs):
            off = f" offset:{1024*i}" if i else ""
            d = Op(f"buffer_load_dwordx4 v{v}, s[{rsrc}:{rsrc+3}], s{sreg} offen{off}{' nt' if nt else ''} lds", "dma",
                   rd=["m0", f"s{sreg}", f"v{v}"], lds_wr=lds, after=after, earliest=earliest, chain="vm")
            S.append(d); ops.append(d)
        return ops
    def dK(s, S, j, **k): return s.dma(S, sW2K, kslot(j), [(f"s_mov_b32 s{sKO}, {j*8192}", [f"s{sKO}"])], sKO, RK, [KD, KD+1], s.c["kvnt"], [], **k)
    def dV(s, S, j, **k): return s.dma(S, sW2K, VBASE + vslot(j), [(f"s_mov_b32 s{sVO}, {j*8192}", [f"s{sVO}"])], sVO, RV, [VD, VD+1], s.c["kvnt"], [], **k)
    def dWQ(s, S, st, **k): return s.dma(S, sW4K, WQBASE + wqslot(st), [], WS + st, RWQ, [WQD + i for i in range(4)], s.c["wqnt"], [], **k)
    def dX(s, S, n, **k):
        st, t = divmod(n, 3)
        return s.dma(S, sW2K, XBASE + xslot(n), [(f"s_add_u32 s{sXO}, s{XS+st}, {t*16384}", [f"s{sXO}"])], sXO, RX, [XD, XD+1], False, [f"X{(n+1)%6}"], **k)
    def dWO(s, S, kk, area, **k):
        return s.dma(S, sW4K, area, [(f"s_mov_b32 s{sWO}, {kk*32768}", [f"s{sWO}"])], sWO, RWO, [WOD + i for i in range(4)], s.c["wont"], [f"W{area}"], **k)
    def stream1(s):
        c = s.c; S = []; nm = [0]; ev = []; seq = [0]
        def at(g, fn): heapq.heappush(ev, (g, seq[0], fn)); seq[0] += 1
        def M(op):
            S.append(op); nm[0] += 1
            while ev and ev[0][0] <= nm[0] - 1: heapq.heappop(ev)[2]()
        XF = lambda n, ks: 64 + n * 8 + ks * 4
        WF = lambda T, ks: T * 8 + ks * 4
        D = {}
        RD = {}
        BAR = {}
        def bar(name, g, vm=(), lg=()):
            b = Op("s_barrier", "bar", earliest=g, latest=g, chain="bar"); b.need_vm = [o for n in vm for o in D[n]]; b.need_lgkm = [o for n in lg for o in RD[n]]
            S.append(b); BAR[name] = b; return b
        def xread(n, e=None):
            RD[f"x{n}"] = [Op(f"ds_read_b128 {rng('a', XF(n, ks), 4)}, v{XA+ks} offset:{xslot(n)}", "ds", rd=[f"v{XA+ks}"], wr=R("a", XF(n, ks), 4),
                              lds_rd=[f"X{(n+1)%6}"], earliest=e) for ks in range(2)]
            S.extend(RD[f"x{n}"])
        def wqread(st, T):
            for ks in range(2):
                for r in range(2):
                    o = Op(f"ds_read_b64_tr_b16 {rng('a', WF(T, ks) + 2*r, 2)}, v{WQA+T} offset:{wqslot(st) + ks*8192 + r*1024}", "ds",
                           rd=[f"v{WQA+T}"], wr=R("a", WF(T, ks) + 2*r, 2), after=[BAR[f"q{st}"]])
                    S.append(o); RD.setdefault(f"wq{st}", []).append(o)
        KF = lambda j, kt, ds: (64 if j == 0 else 0) + (kt * 4 + ds) * 4
        def kread(j, b, e=None):
            RD[f"k{j}"] = [Op(f"ds_read_b128 {rng('a', KF(j, kt, ds), 4)}, v{KA+ds} offset:{kslot(j) + kt*4096}", "ds", rd=[f"v{KA+ds}"],
                              wr=R("a", KF(j, kt, ds), 4), after=[b], earliest=e) for kt in range(2) for ds in range(4)]
            S.extend(RD[f"k{j}"])
        def vread(j, b):
            RD[f"v{j}"] = [Op(f"ds_read_b64_tr_b16 {rng('a', 32 + T*4 + 2*r, 2)}, v{VA+T} offset:{vslot(j) + r*4096}", "ds", rd=[f"v{VA+T}"],
                              wr=R("a", 32 + T*4 + 2*r, 2), after=[b]) for T in range(8) for r in range(2)]
            S.extend(RD[f"v{j}"])
        head = []
        for it in c.get("init", ["wq0", "x0", "x1", "x2", "x3", "x4", "x5", "wq1", "k0", "k1", "v0", "wq2"]):
            f = {"w": s.dWQ, "x": s.dX, "k": s.dK, "v": s.dV}[it[0]]
            D[it] = f(head, int(it.lstrip("wqxkv")))
        s.head = head
        bp = c["bpos"]
        bq = lambda st: -1 if st == 0 else (st - 1) * 48 + bp
        A0 = 384
        it0 = lambda j: A0 + 24 + 51 * j
        battn = lambda j: it0(j) + 33
        bar("q0", -1, vm=["wq0"])
        G = lambda n: max(-1, min(int(c["xpace"] * n - c["xlead"]), 16 * n - 8 - (0 if n % 3 == 0 else 16 * (n % 3) - 2)))
        def xev(n):
            def f():
                xread(n, G(n) if n > 2 else -1)
                if n + 6 < 24: D[f"x{n+6}"] = s.dX(S, n + 6)
            return f
        for n in range(3): xev(n)()
        for T in range(8): wqread(0, T)
        for n in range(3, 24): at(G(n), xev(n))
        def kv(name, g, after=None):
            def f():
                D[name] = (s.dK if name[0] == "k" else s.dV)(S, int(name[1:]), after=[BAR[after]] if after else [], earliest=g)
            at(g, f)
        for i, nme in enumerate(c.get("midlist", ["k2", "v1", "k3", "v2", "k4"])): kv(nme, c["mid"] + 3 * i)
        xfree = {}
        for n in range(18, 23):
            st = next((st for st in range(1, 8) if bq(st) >= G(n) + 10), None)
            xfree[n] = f"q{st}" if st else "a0"
        late = [("k5", "q6"), ("v3", xfree[18]), ("k6", "q6"), ("v4", xfree[19]), ("k7", "q7"), ("v5", xfree[20]), ("v6", xfree[21]), ("v7", xfree[22])]
        gb = lambda nme: bq(int(nme[1:])) if nme[0] == "q" else battn(int(nme[1:]))
        g = bq(5) + 8
        for nme, b in late:
            g = max(g + c.get("latestep", 6), gb(b) + 1); kv(nme, g, b)
        rest = [f"{x}{j}" for j in range(8, 16) for x in "kv"]
        for i, nme in enumerate(rest):
            j = int(nme[1:]); fb = max(0, j - 9) if nme[0] == "k" else j - 8
            gg = max(battn(0) + 1 + int(i * 51 / c["attpace"]), battn(fb) + 1, g + 4); g = gg; kv(nme, gg, f"a{fb}")
        def qepi(t):
            for ds in range(4):
                for hlf in range(2):
                    A = acc(t, 2 * ds + hlf)
                    for i in range(4): S.append(V(f"v_mul_f32 v{A+i}, s{sSC}, v{A+i}", [f"v{A+i}"], [f"v{A+i}"]))
                    for p in range(2):
                        q = QF + (t * 4 + ds) * 4 + 2 * hlf + p
                        S.append(V(f"v_cvt_pk_bf16_f32 v{q}, v{A+2*p}, v{A+2*p+1}", [f"v{q}"], [f"v{A+2*p}", f"v{A+2*p+1}"]))
                q = QF + (t * 4 + ds) * 4
                for p in range(2): S.append(V(f"v_permlane16_swap_b32 v{q+p}, v{q+2+p}", [f"v{q+p}", f"v{q+2+p}"], [f"v{q+p}", f"v{q+2+p}"], kind="perm"))
        for st in range(8):
            order = [(T, t) for T in range(8) for t in range(3)] if st < 7 else [(T, t) for t in range(3) for T in range(8)]
            for k, (T, t) in enumerate(order):
                for ks in range(2):
                    M(mfma(("v", acc(t, T)), ("a", WF(T, ks)), ("a", XF(st * 3 + t, ks)), None if st == 0 and ks == 0 else ("v", acc(t, T))))
                    if st < 7 and nm[0] - 1 == bq(st + 1):
                        lg = [f"wq{st}"] + [f"x{n}" for n in xfree if xfree[n] == f"q{st+1}"]
                        bar(f"q{st+1}", bq(st + 1), vm=[f"wq{st+1}"] + (["k0", "k1", "v0"] if st == 6 else []), lg=lg)
                        if st + 3 < 8: D[f"wq{st+3}"] = s.dWQ(S, st + 3, after=[BAR[f"q{st+1}"]], earliest=bq(st + 1) + 1)
                if st == 7 and T == 7: qepi(t)
            if st < 7:
                for T in range(8): wqread(st + 1, T)
            if st == 6: kread(0, BAR["q7"], e=7 * 48 + 8)
        kread(1, BAR["q7"]); vread(0, BAR["q7"])
        def qk(j, t):
            for kt in range(2):
                for ds in range(4):
                    cc = ("v", sS(t, kt)) if ds else (None if j == 0 else ("v", NM + 4 * t))
                    M(mfma(("v", sS(t, kt)), ("a", KF(j, kt, ds)), ("v", QF + (t * 4 + ds) * 4), cc))
        def firstmax(t):
            r = [f"v{sS(t, 0) + i}" for i in range(8)]; m, tm = f"v{2*t}", f"v{2*t+1}"
            S.append(V(f"v_max3_f32 {m}, {r[0]}, {r[1]}, {r[2]}", [m], r[0:3]))
            S.append(V(f"v_max3_f32 {m}, {m}, {r[3]}, {r[4]}", [m], [m] + r[3:5]))
            S.append(V(f"v_max3_f32 {m}, {m}, {r[5]}, {r[6]}", [m], [m] + r[5:7]))
            S.append(V(f"v_max_f32 {m}, {m}, {r[7]}", [m], [m, r[7]]))
            for sw in ("16", "32"):
                S.append(V(f"v_mov_b32 {tm}, {m}", [tm], [m]))
                S.append(V(f"v_permlane{sw}_swap_b32 {m}, {tm}", [m, tm], [m, tm], kind="perm"))
                S.append(V(f"v_max_f32 {m}, {m}, {tm}", [m], [m, tm]))
            for i in range(4): S.append(V(f"v_sub_f32 v{NM+4*t+i}, 0, {m}", [f"v{NM+4*t+i}"], [m]))
            for x in r: S.append(V(f"v_sub_f32 {x}, {x}, {m}", [x], [x, m]))
        def softmax(j, t, e=None):
            for i in range(8):
                x = f"v{sS(t, 0) + i}"; S.append(V(f"v_exp_f32 {x}, {x}", [x], [x], kind="trans", earliest=e))
            for p in range(4):
                a_ = sS(t, 0) + 2 * p
                S.append(V(f"v_cvt_pk_bf16_f32 v{PP+4*t+p}, v{a_}, v{a_+1}", [f"v{PP+4*t+p}"], [f"v{a_}", f"v{a_+1}"]))
        def pv(j, t):
            M(mfma(("v", LS + 4 * t), ("v", ONES), ("v", PP + 4 * t), ("v", LS + 4 * t) if j else None))
            for T in range(8): M(mfma(("v", acc(t, T)), ("a", 32 + T * 4), ("v", PP + 4 * t), ("v", acc(t, T)) if j else None))
        st_flag = "" if c["local"] else " sc1"
        s.ostores = []
        def oepi(t):
            l = f"v{LS+4*t}"; rc = f"v{LS+4*t+1}"
            S.append(V(f"v_rcp_f32 {rc}, {l}", [rc], [l], kind="trans"))
            for sp in range(4):
                dst = sS(0, 0) + ((t * 4 + sp) % 6) * 4
                for hlf in range(2):
                    A = acc(t, 2 * sp + hlf)
                    for i in range(4): S.append(V(f"v_mul_f32 v{A+i}, {rc}, v{A+i}", [f"v{A+i}"], [f"v{A+i}", rc]))
                    for p in range(2):
                        S.append(V(f"v_cvt_pk_bf16_f32 v{dst+2*hlf+p}, v{A+2*p}, v{A+2*p+1}", [f"v{dst+2*hlf+p}"], [f"v{A+2*p}", f"v{A+2*p+1}"]))
                if sp == 0: S.append(Op(f"s_add_u32 s{sXO}, s{sOST}, {t*4096}", "salu", wr=[f"s{sXO}"]))
                off = f" offset:{sp*1024}" if sp else ""
                o = Op(f"buffer_store_dwordx4 {rng('v', dst, 4)}, v{VL16}, s[{ROW}:{ROW+3}], s{sXO} offen{off}{st_flag}", "store",
                       rd=R("v", dst, 4) + [f"v{VL16}", f"s{sXO}"], chain="vm")
                S.append(o); s.ostores.append(o)
        for t in range(3): qk(0, t); firstmax(t); softmax(0, t)
        for j in range(16):
            for t in range(3):
                if t == 2 and j < 15:
                    vm = ([f"k{j+2}"] if j < 14 else []) + [f"v{j+1}"]
                    lg = [f"k{j+1}", f"v{j}"] + (["k0", "wq7"] + [f"x{n}" for n in xfree if xfree[n] == "a0"] + ["x23"] if j == 0 else [])
                    bar(f"a{j}", battn(j), vm=vm, lg=lg)
                    while ev and ev[0][0] <= nm[0] - 1: heapq.heappop(ev)[2]()
                if j < 15: qk(j + 1, t)
                if t == 2 and j < 14: kread(j + 2, BAR[f"a{j}"])
                pv(j, t)
                if j < 15: softmax(j + 1, t, e=(it0(j + 1) + 17 if (t == 2 and j < 14) else None))
                else: oepi(t)
            if j < 15: vread(j + 1, BAR[f"a{j}"])
        assert not ev, ev
        return S
    def stream2(s):
        c = s.c; S = []; nm = [0]
        A2, OR, WA = 8, 56, 152
        a2 = lambda T, t: A2 + (T * 3 + t) * 4
        pre = []
        for wdw in range(3):
            for T in range(4): pre.append(V(f"v_add_u32 v{WA+4*wdw+T}, {wdw*65536 - CBASE}, v{WOA+T}", [f"v{WA+4*wdw+T}"], [f"v{WOA+T}"]))
        area = lambda kk: (kk % 10) * 16384
        WR = lambda hh, sp, T: (hh % 4) * 64 + (sp * 4 + T) * 4
        ld_flag = " sc1"
        D = {}
        def woread(kk):
            hh, sp = divmod(kk, 4); ar = area(kk)
            for T in range(4):
                for r in range(2):
                    S.append(Op(f"ds_read_b64_tr_b16 {rng('a', WR(hh, sp, T) + 2*r, 2)}, v{WA + 4*(ar >> 16) + T} offset:{(ar & 65535) + r*2048}", "ds",
                                rd=[f"v{WA + 4*(ar >> 16) + T}"], wr=R("a", WR(hh, sp, T) + 2*r, 2), lds_rd=[f"W{ar}"]))
        def oload(u, dst):
            hh, t = divmod(u, 3)
            dst.append(Op(f"s_add_u32 s{sXO}, s{sOLD}, {hh*12288 + t*4096}", "salu", wr=[f"s{sXO}"]))
            for sp in range(4):
                r = OR + (u % 6) * 16 + sp * 4; off = f" offset:{sp*1024}" if sp else ""
                dst.append(Op(f"buffer_load_dwordx4 {rng('v', r, 4)}, v{VL16}, s[{ROW}:{ROW+3}], s{sXO} offen{off}{ld_flag}", "load",
                              rd=[f"v{VL16}", f"s{sXO}"], wr=R("v", r, 4), chain="vm", sub=40))
        s.pre2 = pre
        s.dma2 = []
        for kk in range(10): s.dWO(s.dma2, kk, area(kk))
        s.ld2 = []
        for u in range(5): oload(u, s.ld2)
        for kk in range(4): woread(kk)
        for kk in range(10, 14): s.dWO(S, kk, area(kk))
        for hh in range(8):
            for t in range(3):
                u = hh * 3 + t
                if u + 5 < 24: oload(u + 5, S)
                for T in range(4):
                    for sp in range(4):
                        S.append(mfma(("v", a2(T, t)), ("a", WR(hh, sp, T)), ("v", OR + (u % 6) * 16 + sp * 4), None if hh == 0 and sp == 0 else ("v", a2(T, t))))
                if t == 0 and hh < 7:
                    for kk in range(4 * hh + 4, 4 * hh + 8):
                        woread(kk)
                        if kk + 10 < 32 and kk + 10 >= 14: s.dWO(S, kk + 10, area(kk + 10))
        RA = 164
        S.append(V(f"v_lshl_add_u32 v{RA}, s{sW}, 12, v{VL16}", [f"v{RA}"], [f"v{VL16}"]))
        for T in range(1, 4): S.append(V(f"v_xor_b32 v{RA+T}, {T*4096}, v{RA}", [f"v{RA+T}"], [f"v{RA}"]))
        wr = []
        for t in range(3):
            for T in range(1, 4):
                o = Op(f"ds_write_b128 v{RA}, {rng('v', a2(T, t), 4)} offset:{T*16384 + t*1024}", "dsw", rd=[f"v{RA}"] + R("v", a2(T, t), 4), lds_wr=[f"W{T*16384}"])
                S.append(o); wr.append(o)
        s.red_wr = wr
        tail = []
        b = Op("s_barrier", "bar"); b.need_lgkm = wr; tail.append(b)
        for t in range(3):
            for T in range(1, 4):
                r = OR + (t * 3 + T - 1) * 4
                tail.append(Op(f"ds_read_b128 {rng('v', r, 4)}, v{RA+T} offset:{T*16384 + t*1024}", "ds", rd=[f"v{RA+T}"], wr=R("v", r, 4)))
        for t in range(3):
            A = a2(0, t); r = OR + t * 12
            for i in range(4):
                tail.append(V(f"v_add_f32 v{A+i}, v{A+i}, v{r+i}", [f"v{A+i}"], [f"v{A+i}", f"v{r+i}"]))
                tail.append(V(f"v_add_f32 v{r+4+i}, v{r+4+i}, v{r+8+i}", [f"v{r+4+i}"], [f"v{r+4+i}", f"v{r+8+i}"]))
            for i in range(4): tail.append(V(f"v_add_f32 v{A+i}, v{A+i}, v{r+4+i}", [f"v{A+i}"], [f"v{A+i}", f"v{r+4+i}"]))
            for p in range(2): tail.append(V(f"v_cvt_pk_bf16_f32 v{A+p}, v{A+2*p}, v{A+2*p+1}", [f"v{A+p}"], [f"v{A+2*p}", f"v{A+2*p+1}"]))
            tail.append(Op(f"s_mov_b32 s{sXO}, {t*16384}", "salu", wr=[f"s{sXO}"]))
            tail.append(Op(f"buffer_store_dwordx2 {rng('v', A, 2)}, v251, s[{ROUT}:{ROUT+3}], s{sXO} offen", "store", rd=R("v", A, 2) + ["v251", f"s{sXO}"]))
        s.tail2 = tail
        return S
    def stamp(s, k): return [Op(f"s_memrealtime s[{STAMP+2*k}:{STAMP+2*k+1}]", "salu")] if s.c["stamps"] else []
    def build(s):
        c = s.c
        S1 = s.stream1(); P1 = schedule(S1)
        S2 = s.stream2(); P2 = schedule(S2)
        L = s.prologue() + s.head + s.prologue2()
        i0 = next(i for i, o in enumerate(P1) if o.kind == "mfma")
        ia = [i for i, o in enumerate(P1) if o.kind == "mfma"][384]
        L += P1[:i0] + s.stamp(1) + P1[i0:ia] + s.stamp(2) + P1[ia:] + s.stamp(3)
        raw = lambda t, kind="salu", **k: Op(t, kind, **k)
        bb = Op("s_barrier", "bar"); L.append(raw("s_waitcnt lgkmcnt(0)", "wait")); L.append(bb)
        fl = Op("s_nop 0", "salu"); fl.need_vm = list(s.ostores)
        fs = "" if c["local"] else " sc1"
        L += s.pre2 + [V(f"v_mov_b32 v2, s{sTAG}", ["v2"], []), V("v_mov_b32 v3, 0", ["v3"], []), V(f"v_lshrrev_b32 v4, 2, v{VL16}", ["v4"], [f"v{VL16}"])]
        L += [fl, raw("s_mov_b64 exec, 1"),
              Op(f"buffer_store_dword v2, v3, s[{RFL}:{RFL+3}], s{sFST} offen{fs}", "store", rd=["v2", "v3"]), raw("s_mov_b64 exec, -1")]
        L += s.dma2
        L += [raw("s_mov_b64 exec, 0xff"), raw(f"s_mov_b32 s{sT1}, 0"), Op("L_poll:", "label"),
              Op(f"buffer_load_dword v5, v4, s[{RFL}:{RFL+3}], s{sFLD} offen sc1", "load", rd=["v4"], wr=["v5"])]
        w = raw("s_waitcnt vmcnt(0)", "wait"); w.waitall = True
        L += [w, V(f"v_cmp_ne_u32 vcc, s{sTAG}, v5", ["vcc"], []), raw(f"s_add_u32 s{sT1}, s{sT1}, 1"), raw("s_nop 2"),
              Op("s_cbranch_vccz L_go", "branch"), raw(f"s_cmp_lt_u32 s{sT1}, 0x40000"), Op("s_cbranch_scc1 L_poll", "branch"),
              Op("L_go:", "label"), raw("s_mov_b64 exec, -1")]
        L += s.stamp(4) + s.ld2 + P2 + s.tail2
        L += [raw(f"s_or_b32 s{sT1}, s{sH}, s{sW}"), raw(f"s_cmp_lg_u32 s{sT1}, 0"), Op("s_cbranch_scc1 L_fin", "branch"),
              raw(f"s_lshl_b32 s{sT1}, s{sB}, 7"), raw(f"s_add_u32 s{sT1}, s{sT1}, {GEN_OFF - FLAG_OFF}"), raw("s_mov_b64 exec, 1"),
              Op(f"buffer_store_dword v2, v3, s[{RFL}:{RFL+3}], s{sT1} offen sc1", "store", rd=["v2", "v3"]), raw("s_mov_b64 exec, -1"), Op("L_fin:", "label")]
        if c["stamps"]:
            L += [raw("s_waitcnt vmcnt(0)", "wait")] + s.stamp(5) + [raw("s_waitcnt lgkmcnt(0)", "wait"), raw(f"s_cmp_lg_u32 s{sW}, 0"), Op("s_cbranch_scc1 L_end", "branch"),
                  raw(f"s_mov_b32 s{ROW}, s18"), raw(f"s_and_b32 s{ROW+1}, s19, 0xffff"), raw(f"s_mov_b32 s{ROW+2}, 0x10000000"),
                  raw(f"s_lshl_b32 s{sT1}, s2, 7"), raw(f"s_add_u32 s{sT1}, s{sT1}, {STAMP_OFF}")]
            for k in range(6):
                L += [V(f"v_mov_b32 v{8+2*k}, s{STAMP+2*k}", [f"v{8+2*k}"], []), V(f"v_mov_b32 v{9+2*k}, s{STAMP+2*k+1}", [f"v{9+2*k}"], []),
                      Op(f"buffer_store_dwordx2 v[{8+2*k}:{9+2*k}], v3, s[{ROW}:{ROW+3}], s{sT1} offen offset:{8*k}", "store", rd=[f"v{8+2*k}", f"v{9+2*k}"])]
        L += [Op("L_end:", "label"), Op("s_endpgm", "branch")]
        L = insert_waits(L)
        log = []; L, nn = insert_nops(L, log)
        s.log = log; s.L = L
        return L
    def text(s):
        L = s.build()
        hdr = open("standalone__mha_block_cached__near_ridge.s.ref").read().split("; Override")[0]
        t = hdr + "; @launch grid=(256,1,1) block=(256,1,1) lds=163840\n"
        t += f'.amdgcn_target "amdgcn-amd-amdhsa--gfx950"\n.text\n.globl {KN}\n.p2align 8\n.type {KN},@function\n{KN}:\n'
        t += "".join((o.text if o.kind == "label" else "    " + o.text) + "\n" for o in L)
        t += (f'.section .rodata,"a"\n.p2align 6\n.amdhsa_kernel {KN}\n  .amdhsa_next_free_vgpr 512\n  .amdhsa_next_free_sgpr 102\n  .amdhsa_accum_offset 256\n'
              "  .amdhsa_group_segment_fixed_size 0\n  .amdhsa_kernarg_size 64\n  .amdhsa_user_sgpr_count 2\n  .amdhsa_user_sgpr_kernarg_segment_ptr 1\n"
              "  .amdhsa_system_sgpr_workgroup_id_x 1\n.end_amdhsa_kernel\n")
        return t

if __name__ == "__main__":
    out = sys.argv[1]; cfg = json.loads(sys.argv[2]) if len(sys.argv) > 2 else {}
    g = Gen(**cfg); t = g.text(); open(out, "w").write(t)
    L = g.L; mi = [i for i, o in enumerate(L) if o.kind == "mfma"]
    n1 = 384 + 24 + 15 * 51 + 27
    print("ops", len(L), "mfma", len(mi), "nops", g.log[:40], len(g.log))
    print("est cycles: qproj", estimate(L[mi[0]:mi[384]]), "attn", estimate(L[mi[384]:mi[n1 - 1] + 1]), "attn tail", estimate(L[mi[n1-1]:mi[n1]]), "ph2", estimate(L[mi[n1]:mi[-1] + 1]), "tail", estimate(L[mi[-1]:]))
```

```python
import re
from collections import defaultdict

def R(p, a, n=1): return [f"{p}{i}" for i in range(a, a + n)]
def rng(p, a, n): return f"{p}{a}" if n == 1 else f"{p}[{a}:{a+n-1}]"

class Op:
    __slots__ = ("text", "kind", "rd", "wr", "c", "lds_rd", "lds_wr", "need_vm", "need_lgkm", "earliest", "latest", "after",
                 "idx", "gap", "preds", "succs", "dl", "tag", "chain", "sub", "waitall")
    def __init__(s, text, kind, rd=(), wr=(), c=(), lds_rd=(), lds_wr=(), earliest=None, latest=None, after=(), tag="", chain=None, sub=None):
        s.text, s.kind, s.rd, s.wr, s.c = text, kind, list(rd), list(wr), list(c)
        s.lds_rd, s.lds_wr = list(lds_rd), list(lds_wr)
        s.need_vm, s.need_lgkm = [], []
        s.earliest, s.latest, s.after, s.tag, s.chain, s.sub = earliest, latest, list(after), tag, chain, sub
        s.gap = None; s.waitall = False
    def __repr__(s): return f"<{s.kind}:{s.text}>"

VALU = ("valu", "trans", "perm")
VM = ("dma", "load", "store")
COST = {"valu": 4, "trans": 8, "perm": 8, "ds": 4, "dsw": 4, "dma": 4, "load": 4, "store": 4}
MEM = ("ds", "dsw", "dma", "load", "store")
MEM2 = 2
SCAL = ("salu", "bar", "wait")

MLAT = [4]
def lat(p, s, typ):
    if typ == "raw":
        if p.kind == "mfma":
            if s.kind == "mfma": return 0
            return MLAT[0]
        if p.kind == "ds": return p.sub or 6
        if p.kind == "load": return p.sub or 30
        if p.kind == "dma": return 0
        if p.kind == "salu" and s.kind in VM: return 1
        if p.kind in VALU and s.kind in ("ds", "dsw", "dma", "load", "store"): return 1
        if p.kind in VALU and s.kind == "perm": return 1
        if p.kind == "trans" and s.kind == "valu": return 1
        if p.kind in VALU and s.kind == "mfma": return 1
        return 0
    if typ == "war":
        if p.kind == "store" : return 1
        if p.kind in VM and s.kind == "salu": return 1
        if p.kind == "mfma" and s.kind in VALU: return 0
        return 0
    if typ == "ldswar": return 6
    if typ == "waw":
        if p.kind == "mfma" and s.kind != "mfma": return 4
        return 0
    return 0

def build_dag(ops):
    lastw, readers = {}, defaultdict(list)
    lw_l, rd_l = {}, defaultdict(list)
    chains = {}
    for i, o in enumerate(ops):
        o.idx = i; o.preds = {}; o.succs = {}
    inside = set(ops)
    def edge(p, s, l):
        if p is s or p not in inside: return
        if s.preds.get(p, -1) < l: s.preds[p] = l; p.succs[s] = l
    for o in ops:
        for r in o.rd + o.c:
            if r in lastw: edge(lastw[r], o, lat(lastw[r], o, "raw"))
        for r in o.wr:
            if r in lastw: edge(lastw[r], o, lat(lastw[r], o, "waw"))
            for q in readers[r]: edge(q, o, lat(q, o, "war"))
        for r in o.lds_rd:
            if r in lw_l: edge(lw_l[r], o, 0)
        for r in o.lds_wr:
            if r in lw_l: edge(lw_l[r], o, 0)
            for q in rd_l[r]: edge(q, o, lat(q, o, "ldswar"))
        for p in o.after: edge(p, o, 0)
        for p in o.need_vm: edge(p, o, 0)
        for p in o.need_lgkm: edge(p, o, 5)
        if o.chain is not None:
            if o.chain in chains: edge(chains[o.chain], o, 0)
            chains[o.chain] = o
        for r in o.rd + o.c: readers[r].append(o)
        for r in o.wr: lastw[r] = o; readers[r] = []
        for r in o.lds_rd: rd_l[r].append(o)
        for r in o.lds_wr: lw_l[r] = o; rd_l[r] = []

def schedule(ops, verbose=False, mlat=4):
    MLAT[0] = mlat
    build_dag(ops)
    M = [o for o in ops if o.kind == "mfma"]
    for g, m in enumerate(M): m.gap = g
    n = len(M)
    F = [o for o in ops if o.kind != "mfma"]
    INF = n + 1000
    hard = {}
    for o in reversed(ops):
        if o.kind == "mfma": continue
        d, h = INF, INF
        for s, l in o.succs.items():
            if s.kind == "mfma": d = min(d, s.gap - 1 - l); h = min(h, s.gap - 1)
            else: d = min(d, s.dl - l); h = min(h, hard[s])
        if o.latest is not None: d = min(d, o.latest)
        o.dl = min(d, h); hard[o] = h
    placed = set(); gaps = defaultdict(list); pending = list(F)
    def ready(o, g, strict=True):
        for p, l in o.preds.items():
            if p.gap is None: return False
            if p.kind == "mfma":
                if p.gap + (l if strict else 0) > g: return False
            elif p.gap + (l if strict else 0) > g: return False
        return True
    for g in range(-1, n):
        last = g == n - 1
        used = 0; scal = 0; nv = 0; nmem = 0
        while True:
            best = None
            for o in pending:
                forced = hard[o] <= g or last
                if not forced and o.earliest is not None and o.earliest > g: continue
                if not ready(o, g, strict=not forced): continue
                urgent = forced or o.dl <= g
                if g >= 0 and not urgent:
                    if o.kind in SCAL:
                        if scal >= 1: continue
                    else:
                        c = COST[o.kind]
                        if used + c > 8: continue
                        if o.kind == "valu" and nv >= 1 and o.dl > g + 3 and o.tag != "eager": continue
                        if o.kind in MEM and nmem >= 1 and o.dl > g + MEM2: continue
                elif g < 0 and not urgent and o.earliest is None and False: continue
                key = (0 if forced else 1, o.dl, o.idx)
                if best is None or key < best[0]: best = (key, o)
            if best is None: break
            o = best[1]
            if g < 0 and not (hard[o] <= g or o.dl <= g or (o.earliest is not None and o.earliest < 0)):
                cand = [x for x in pending if (hard[x] <= g or x.dl <= g or (x.earliest is not None and x.earliest < 0)) and ready(x, g, strict=False)]
                if not cand: break
                o = min(cand, key=lambda x: x.idx)
            o.gap = g; gaps[g].append(o); pending.remove(o)
            if o.kind in SCAL: scal += 1
            else:
                used += COST[o.kind]
                if o.kind == "valu": nv += 1
                if o.kind in MEM: nmem += 1
    assert not pending, pending[:5]
    out = []
    cls = lambda o: 0 if o.kind in SCAL else (1 if o.kind in ("ds", "dsw", "dma", "load", "store") else 2)
    for g in range(-1, n):
        if g >= 0: out.append(M[g])
        L = gaps[g]
        if g < 0 or g == n - 1:
            L = sorted(L, key=lambda o: o.idx) if g < 0 else L
            out += L; continue
        rem = list(L); S = set(L)
        while rem:
            c = [o for o in rem if not any(p in S and p in rem for p in o.preds)]
            o = min(c, key=lambda o: (cls(o), o.idx)); out.append(o); rem.remove(o)
    pos = {o: i for i, o in enumerate(out)}
    for o in ops:
        for p in o.preds: assert pos[p] < pos[o], (p, o)
    return out

def insert_waits(seq, hoist=True):
    out = []
    vm, lg = [], []
    vmdone = lgdone = -1
    ordv, ordl = {}, {}
    regw = {}
    ldsw = {}; ldsr = defaultdict(list)
    lastm = -1; mpos = []
    for o in seq:
        nv, nl = -1, -1
        def need(p):
            nonlocal nv, nl
            if p in ordv: nv = max(nv, ordv[p])
            elif p in ordl: nl = max(nl, ordl[p])
        for r in o.rd + o.c + o.wr:
            if r in regw: need(regw[r])
        for r in o.lds_rd:
            if r in ldsw: need(ldsw[r])
        for r in o.lds_wr:
            for q in ldsr[r]: need(q)
            if r in ldsw and ldsw[r].kind != o.kind: need(ldsw[r])
        for p in o.need_vm + o.need_lgkm: need(p)
        if nv > vmdone or nl > lgdone:
            at = len(out)
            if hoist and lastm >= 0 and o.kind not in ("bar",):
                h = lastm + 1
                ok = (nv <= vmdone or vm[nv] < h) and (nl <= lgdone or lg[nl] < h)
                ok = ok and not any(x.kind in ("label", "branch", "bar") for x in out[h:])
                if ok: at = h
            parts = []
            if nv > vmdone:
                cnt = sum(1 for x in vm[nv + 1:] if x < at); cnt = min(cnt, 63)
                issued = sum(1 for x in vm if x < at)
                vmdone = issued - cnt - 1; parts.append(f"vmcnt({cnt})")
            if nl > lgdone:
                if len(mpos) > 9:
                    old = mpos[-9]
                    while nl + 1 < len(lg) and lg[nl + 1] < old: nl += 1
                cnt = sum(1 for x in lg[nl + 1:] if x < at); cnt = min(cnt, 15)
                issued = sum(1 for x in lg if x < at)
                lgdone = issued - cnt - 1; parts.append(f"lgkmcnt({cnt})")
            w = Op("s_waitcnt " + " ".join(parts), "wait")
            if at < len(out) and out[at].kind == "wait" and out[at].tag == "auto":
                old = dict(re.findall(r"(\w+)\((\d+)\)", out[at].text)); new = dict(re.findall(r"(\w+)\((\d+)\)", w.text))
                for k, v in new.items(): old[k] = str(min(int(v), int(old.get(k, 99))))
                out[at].text = "s_waitcnt " + " ".join(f"{k}({v})" for k, v in old.items())
            else:
                w.tag = "auto"; out.insert(at, w)
                vm = [x + (x >= at) for x in vm]; lg = [x + (x >= at) for x in lg]
        pos = len(out); out.append(o)
        if o.waitall:
            vmdone = len(vm) - 1
            if o.waitall is True: lgdone = len(lg) - 1
        isasync = False
        if o.kind in VM: ordv[o] = len(vm); vm.append(pos); isasync = True
        elif o.kind in ("ds", "dsw"): ordl[o] = len(lg); lg.append(pos); isasync = True
        for r in o.wr:
            if isasync: regw[r] = o
            else: regw.pop(r, None)
        for r in o.lds_wr: ldsw[r] = o; ldsr[r] = []
        for r in o.lds_rd: ldsr[r].append(o)
        if o.kind == "mfma": lastm = pos; mpos.append(pos)
    return out

def states(o):
    if o.kind in ("label", "comment"): return 0
    m = re.match(r"s_nop (\d+)", o.text)
    return int(m.group(1)) + 1 if m else 1

def insert_nops(seq, log=None):
    out = []; nn = 0
    W = 14
    for o in seq:
        if o.kind in ("label", "comment"): out.append(o); continue
        need = 0; d = 0
        rd = set(o.rd); cc = set(o.c); wr = set(o.wr)
        for p in reversed(out[-40:]):
            if d >= W: break
            pw = set(p.wr); req = 0
            if p.kind == "mfma":
                if o.kind == "mfma":
                    if pw & rd: req = 8
                    if pw & cc and p.wr != o.c: req = max(req, 6)
                    if pw & wr and p.wr != o.c: req = max(req, 8)
                else:
                    if pw & (rd | wr): req = 8
                    if o.kind in VALU and set(p.c) & wr: req = max(req, 3)
            elif p.kind in VALU:
                vw = {r for r in pw if r[0] in "va" and r != "vcc"}; sw = pw - vw
                if o.kind == "mfma" and vw & (rd | cc): req = 2
                if o.kind == "perm" and vw & rd: req = 2
                if o.sub == "dpp" and vw & rd: req = 2
                if o.sub == "rfl" and vw & rd: req = max(req, 1)
                if p.kind == "trans" and o.kind in ("valu", "perm") and vw & rd: req = max(req, 1)
                if sw & rd:
                    req = max(req, 5 if o.kind in VM else (2 if o.kind in VALU else 3))
            elif p.kind == "salu":
                if "m0" in pw and o.kind == "dma": req = 1
            elif p.kind == "store":
                if set(p.rd) & wr and o.kind != "salu": req = 2
            need = max(need, req - d)
            d += states(p)
        if need > 0:
            out.append(Op(f"s_nop {need-1}", "salu", tag="hz")); nn += need
            if log is not None: log.append((need, o.text))
        out.append(o)
    return out, nn

def estimate(seq):
    tot = 0; cur = None; res = []
    def close(c):
        if c is None: return 0
        body = c["body"] + 4 * max(0, c["scal"] - 1) + c["pen"]
        return max(16, 8 + body)
    for o in seq:
        if o.kind in ("label", "comment"): continue
        if o.kind == "mfma":
            tot += close(cur); cur = dict(body=0, scal=0, pen=0, lastv=False, nv=0); continue
        if cur is None: tot += 4 * states(o); continue
        if o.kind in SCAL or o.kind == "branch":
            if cur["body"]: cur["body"] += 4 * states(o)
            else: cur["scal"] += states(o)
        else:
            cur["body"] += COST[o.kind]
            if o.kind not in VALU and cur["lastv"]: cur["pen"] += 8
            if o.kind == "valu":
                cur["nv"] += 1
                if cur["nv"] == 2: cur["pen"] += 2
            cur["lastv"] = o.kind in VALU
    return tot + close(cur)
```

```python
import sys, heapq, struct, json
from sched import *

KN = "standalone__mha_block_cached__near_ridge_kernel"
fbits = lambda x: struct.unpack("<I", struct.pack("<f", x))[0]

ACC, LS, QF, SS, PP, NM, ONES = 8, 104, 116, 164, 188, 200, 212
KA, VA, KD, VD, WOD = 216, 220, 228, 230, 244
WA = 216
VL16 = 248
WQA, XA, XD, WQD = 188, 196, 200, 204
T0 = 0
acc = lambda t, T: ACC + (t * 8 + T) * 4
sS = lambda t, kt: SS + (t * 2 + kt) * 4
sB, sH, sW, sROT = 20, 21, 22, 23
RX, RWQ, RK, RV, RWO, RWS, ROUT = 24, 28, 32, 36, 40, 44, 48
sWOI = 52
XS, WS = 56, 64
sPS = 56
sW2K, sW4K, sHQ, sJ, sKO, sVO, sWO, sXO, sTAG, sSC, sT1, sT2, sT3, sTHR = 72, 73, 74, 75, 76, 77, 78, 79, 80, 81, 82, 83, 84, 85
sOST, sF1, sF2, sPL = 86, 87, 88, 89
sCK, sOLD = 90, 96
STAMP = 100
KBASE, CBASE, VBASE, WQBASE, XBASE = 0, 65536, 98304, 40960, 90112
wqslot = lambda s: ((s + 1) % 3) * 16384
xslot = lambda n: ((n + 1) % 6) * 8192
blocks = lambda a, n: [f"L{b}" for b in range(a // 8192, (a + n - 1) // 8192 + 1)]
PART_OFF = 13 << 20
F1_OFF, F2_OFF, GEN_OFF, WS_USED = 32 << 20, (32 << 20) + 0x8000, (32 << 20) + 0x10000, (32 << 20) + 0x20000
OF = 164
STAMP_OFF = 255 << 20

def mfma(d, a_, b_, c):
    ct = "0" if c is None else rng(c[0], c[1], 4)
    return Op(f"v_mfma_f32_16x16x32_bf16 {rng(d[0], d[1], 4)}, {rng(a_[0], a_[1], 4)}, {rng(b_[0], b_[1], 4)}, {ct}", "mfma",
              rd=R(*a_, 4) + R(*b_, 4), wr=R(*d, 4), c=[] if c is None else R(*c, 4))
def V(text, wr, rd, kind="valu", **k): return Op(text, kind, rd=rd, wr=wr, **k)
def SA(text, wr, rd=(), **k): return Op(text, "salu", rd=rd, wr=list(wr) + ["scc"] if k.pop("scc", False) else wr, **k)
def srd(r): return R("s", r, 4)

class Gen:
    def __init__(s, **cfg):
        s.c = dict(sp=4, xlat=40, x345=20, kvstart=244, kvburst=4, kvgap=34, wostart=30, wogap=30, kvkeep=5, slot_att=(2, 6, 33, 37, 41, 45, 49), thr=2.0 ** 30, slow=True,
                   xpace=12, xlead=0, bpos=36, mid=100, stamps=False, local=False, dump=None, kvnt=True, attpace=1.5, npf=12,
                   wont=False, wqnt=False, lb=0, l2=0, nhead1=8, pf=True, pin=True, split=True, ost='sc1')
        s.c.update(cfg)
    def prologue(s):
        o = []; a = o.append
        def sa(t, wr, rd=()): a(Op(t, "salu", rd=rd, wr=wr))
        def va(t, wr, rd=(), **k): a(Op(t, "valu", rd=rd, wr=wr, **k))
        sa("s_cmp_ge_u32 s2, 256", ["scc"]); a(Op("s_cbranch_scc1 L_end", "branch"))
        sa("s_load_dwordx16 s[4:19], s[0:1], 0", [])
        if s.c["stamps"]: sa(f"{s.c.get('clk', 's_memrealtime')} s[{STAMP}:{STAMP+1}]", [])
        if s.c["pf"]:
            sa("s_getpc_b64 s[24:25]", []); a(Op("L_pc:", "label"))
            sa("s_lshr_b32 s26, s2, 3", []); sa("s_lshl_b32 s26, s26, 11", [])
            va("v_lshl_add_u32 v2, v0, 6, s26", ["v2"]); va("v_min_u32 v2, L_codeend-L_pc-4, v2", ["v2"]); va("v_mov_b32 v3, s25", ["v3"])
            va("v_add_co_u32 v2, vcc, s24, v2", ["v2", "vcc"]); sa("s_nop 1", []); va("v_addc_co_u32 v3, vcc, 0, v3, vcc", ["v3", "vcc"])
            va("v_cmp_gt_u32 vcc, 32, v0", ["vcc"]); sa("s_nop 1", []); sa("s_and_saveexec_b64 s[26:27], vcc", []); a(Op("s_cbranch_execz L_nopf", "branch"))
            sa("global_load_dword v255, v[2:3], off", []); a(Op("L_nopf:", "label")); sa("s_mov_b64 exec, -1", [])
        va("v_lshrrev_b32 v1, 6, v0", ["v1"]); va("v_and_b32 v0, 63, v0", ["v0"])
        lb = s.c["lb"]
        sa(f"s_and_b32 s{sT1}, s2, 7", []); sa(f"s_lshr_b32 s{sT2}, s2, 3", [])
        va(f"v_readfirstlane_b32 s{sW}, v1", [f"s{sW}"], ["v1"], sub="rfl")
        sa(f"s_lshr_b32 s{sB}, s{sT1}, {lb}", []); sa(f"s_lshl_b32 s{sB}, s{sB}, {lb}", []); sa(f"s_and_b32 s{sT3}, s{sT2}, {(1<<lb)-1}", []); sa(f"s_add_u32 s{sB}, s{sB}, s{sT3}", [])
        sa(f"s_and_b32 s{sH}, s{sT1}, {(1<<lb)-1}", []); sa(f"s_lshl_b32 s{sH}, s{sH}, {5-lb}", []); sa(f"s_lshr_b32 s{sT2}, s{sT2}, {lb}", []); sa(f"s_add_u32 s{sH}, s{sH}, s{sT2}", [])
        sa(f"s_lshl_b32 s{sROT}, s{sT3}, {3-lb}", []); sa(f"s_lshr_b32 s{sT1}, s{sT1}, {lb}", []); sa(f"s_add_u32 s{sROT}, s{sROT}, s{sT1}", []); sa(f"s_add_u32 s{sROT}, s{sROT}, s{sH}", [])
        va("v_lshrrev_b32 v2, 4, v0", ["v2"]); va("v_and_b32 v3, 15, v0", ["v3"])
        va("v_lshrrev_b32 v4, 3, v0", ["v4"]); va("v_and_b32 v5, 7, v0", ["v5"])
        va("v_lshl_add_u32 v6, v1, 4, v2", ["v6"]); va("v_lshlrev_b32 v6, 13, v6", ["v6"])
        va("v_lshlrev_b32 v7, 1, v2", ["v7"]); va("v_xor_b32 v7, v7, v3", ["v7"]); va(f"v_lshl_add_u32 v{WQD}, v7, 4, v6", [f"v{WQD}"])
        va(f"v_add_u32 v{WQD+1}, {4*8192-1024}, v{WQD}", [f"v{WQD+1}"])
        va(f"v_xor_b32 v{WQD+2}, 128, v{WQD}", [f"v{WQD+2}"]); va(f"v_add_u32 v{WQD+2}, {2*(4*8192-1024)}, v{WQD+2}", [f"v{WQD+2}"])
        va(f"v_add_u32 v{WQD+3}, {4*8192-1024}, v{WQD+2}", [f"v{WQD+3}"])
        va("v_mul_u32_u24 v6, 48, v1", ["v6"]); va("v_add_u32 v6, v6, v4", ["v6"]); va("v_lshlrev_b32 v6, 10, v6", ["v6"])
        va("v_xor_b32 v7, v5, v2", ["v7"]); va(f"v_lshl_add_u32 v{XD}, v7, 4, v6", [f"v{XD}"])
        va(f"v_xor_b32 v{XD+1}, 64, v{XD}", [f"v{XD+1}"]); va(f"v_add_u32 v{XD+1}, {8192-1024}, v{XD+1}", [f"v{XD+1}"])
        sa(f"s_lshl_b32 s{sW2K}, s{sW}, 11", [], [f"s{sW}"]); sa(f"s_lshl_b32 s{sW4K}, s{sW}, 12", [])
        for k in range(3):
            sa(f"s_add_u32 s{sT1}, s{sROT}, {k}", []); sa(f"s_and_b32 s{sT1}, s{sT1}, 7", [])
            sa(f"s_lshl_b32 s{XS+k}, s{sT1}, 7", []); sa(f"s_lshl_b32 s{WS+k}, s{sT1}, 19", [])
        sa(f"s_lshl_b32 s{sT1}, s{sH}, 8", []); sa(f"s_mul_i32 s{sT2}, s{sB}, 196608", [])
        sa(f"s_lshl_b32 s{sT3}, s{sB}, 5", []); sa(f"s_add_u32 s{sT3}, s{sT3}, s{sH}", []); sa(f"s_lshl_b32 s{sT3}, s{sT3}, 17", [])
        for r in (RX, RWQ, RK, RV, RWO, RWS, ROUT): sa(f"s_mov_b32 s{r+3}, 0x20000", [])
        sa(f"s_mov_b32 s{RX+2}, 196608", []); sa(f"s_sub_u32 s{RWQ+2}, 0x400000, s{sT1}", [])
        sa(f"s_mov_b32 s{RK+2}, 0x20000", []); sa(f"s_mov_b32 s{RV+2}, 0x20000", [])
        a(Op("s_waitcnt lgkmcnt(0)", "wait"))
        def base(r, p, off):
            sa(f"s_add_u32 s{r}, s{p}, {off}", [f"s{r}"]); sa(f"s_addc_u32 s{r+1}, s{p+1}, 0", [f"s{r+1}"]); sa(f"s_and_b32 s{r+1}, s{r+1}, 0xffff", [f"s{r+1}"])
        base(RWQ, 10, f"s{sT1}"); base(RX, 4, f"s{sT2}"); base(RK, 6, f"s{sT3}"); base(RV, 8, f"s{sT3}")
        va("v_lshl_add_u32 v6, v1, 3, v2", ["v6"])
        va("v_and_b32 v7, 15, v6", ["v7"]); va("v_xor_b32 v7, v7, v3", ["v7"]); va("v_lshlrev_b32 v6, 8, v6", ["v6"])
        va(f"v_lshl_add_u32 v{KD}, v7, 4, v6", [f"v{KD}"]); va(f"v_xor_b32 v{KD+1}, 64, v{KD}", [f"v{KD+1}"])
        va("v_lshlrev_b32 v7, 1, v2", ["v7"]); va("v_xor_b32 v7, v7, v3", ["v7"])
        va(f"v_lshl_add_u32 v{VD}, v7, 4, v6", [f"v{VD}"]); va(f"v_xor_b32 v{VD+1}, 128, v{VD}", [f"v{VD+1}"])
        return o
    def prologue2(s):
        o = []; a = o.append
        def sa(t, wr=(), rd=()): a(Op(t, "salu", rd=rd, wr=wr))
        def va(t, wr, rd=(), **k): a(Op(t, "valu", rd=rd, wr=wr, **k))
        def base(r, p, off):
            sa(f"s_add_u32 s{r}, s{p}, {off}"); sa(f"s_addc_u32 s{r+1}, s{p+1}, 0"); sa(f"s_and_b32 s{r+1}, s{r+1}, 0xffff")
        sa(f"s_mov_b32 s{sT1}, {GEN_OFF}"); sa(f"s_load_dword s{sTAG}, s[18:19], s{sT1}")
        for k in range(3, 8):
            sa(f"s_add_u32 s{sT1}, s{sROT}, {k}"); sa(f"s_and_b32 s{sT1}, s{sT1}, 7")
            sa(f"s_lshl_b32 s{XS+k}, s{sT1}, 7"); sa(f"s_lshl_b32 s{WS+k}, s{sT1}, 19")
        sa(f"s_lshr_b32 s{sHQ}, s{sH}, 2"); sa(f"s_and_b32 s{sJ}, s{sH}, 3")
        sa(f"s_lshl_b32 s{sT1}, s{sHQ}, 19"); sa(f"s_lshl_b32 s{sT2}, s{sJ}, 8"); sa(f"s_add_u32 s{sT1}, s{sT1}, s{sT2}")
        base(RWO, 12, f"s{sT1}"); sa(f"s_sub_u32 s{RWO+2}, 0x400000, s{sT1}")
        sa(f"s_mul_i32 s{sT3}, s{sB}, {192*1024}"); sa(f"s_add_u32 s{sT3}, s{sT3}, s{sT2}"); sa(f"s_lshl_b32 s{sT1}, s{sHQ}, 5"); sa(f"s_add_u32 s{sT3}, s{sT3}, s{sT1}")
        base(ROUT, 14, f"s{sT3}"); sa(f"s_sub_u32 s{ROUT+2}, {8*192*1024}, s{sT3}")
        base(RWS, 18, 0); sa(f"s_mov_b32 s{RWS+2}, {WS_USED}")
        sa(f"s_lshl_b32 s1, s{sB}, 2"); sa(f"s_add_u32 s1, s1, s{sW}"); sa("s_lshl_b32 s1, s1, 5")
        for i in range(4):
            sa(f"s_xor_b32 s{sT1}, s{sH}, {i}"); sa(f"s_add_u32 s{sT2}, s1, s{sT1}"); sa(f"s_mul_i32 s{sOLD+i if i else sOST}, s{sT2}, 12288")
            sa(f"s_and_b32 s{sT1}, s{sT1}, 3"); sa(f"s_lshl_b32 s{sWOI+i}, s{sT1}, 17")
        sa(f"s_lshl_b32 s{sF1}, s{sB}, 3"); sa(f"s_add_u32 s{sF1}, s{sF1}, s{sHQ}"); sa(f"s_lshl_b32 s{sF1}, s{sF1}, 2")
        sa(f"s_add_u32 s{sPL}, s{sF1}, s{sJ}"); sa(f"s_lshl_b32 s{sPL}, s{sPL}, 2"); sa(f"s_add_u32 s{sPL}, s{sPL}, s{sW}"); sa(f"s_mul_i32 s{sPL}, s{sPL}, 10752"); sa(f"s_add_u32 s{sPL}, s{sPL}, {PART_OFF}")
        sa(f"s_add_u32 s{sF1}, s{sF1}, s{sW}"); sa(f"s_lshl_b32 s{sF1}, s{sF1}, 7"); sa(f"s_add_u32 s{sF1}, s{sF1}, {F1_OFF}")
        sa(f"s_lshl_b32 s{sF2}, s{sB}, 2"); sa(f"s_add_u32 s{sF2}, s{sF2}, s{sJ}"); sa(f"s_lshl_b32 s{sF2}, s{sF2}, 2"); sa(f"s_add_u32 s{sF2}, s{sF2}, s{sW}")
        sa(f"s_lshl_b32 s{sF2}, s{sF2}, 7"); sa(f"s_add_u32 s{sF2}, s{sF2}, {F2_OFF}")
        sa(f"s_mov_b32 s{sTHR}, {hex(fbits(s.c['thr']))}")
        sa(f"s_mov_b32 s{sSC}, {hex(fbits(1.4426950408889634 * 128 ** -0.5))}")
        va("v_bfe_u32 v6, v0, 2, 2", ["v6"]); va("v_and_b32 v7, 3, v0", ["v7"]); va("v_lshlrev_b32 v7, 3, v7", ["v7"])
        va(f"v_lshlrev_b32 v{VL16}, 4, v0", [f"v{VL16}"])
        t = 249; u = 250
        va(f"v_and_b32 v{t}, 1, v2", [f"v{t}"]); va(f"v_lshl_add_u32 v{t}, v{t}, 2, v6", [f"v{t}"])
        va(f"v_lshl_add_u32 v{t}, v{t}, 5, v7", [f"v{t}"])
        va(f"v_lshl_add_u32 v{u}, v2, 3, v6", [f"v{u}"]); va(f"v_lshl_add_u32 v{WQA}, v{u}, 8, v{t}", [f"v{WQA}"])
        va(f"v_add_u32 v{WQA}, {WQBASE}, v{WQA}", [f"v{WQA}"])
        va(f"v_lshl_add_u32 v{u}, v2, 2, v6", [f"v{u}"]); va(f"v_lshl_add_u32 v{VA}, v{u}, 8, v{t}", [f"v{VA}"])
        va(f"v_add_u32 v{VA}, {VBASE}, v{VA}", [f"v{VA}"])
        for T in range(1, 8):
            va(f"v_xor_b32 v{WQA+T}, {T*32}, v{WQA}", [f"v{WQA+T}"]); va(f"v_xor_b32 v{VA+T}, {T*32}, v{VA}", [f"v{VA+T}"])
        va(f"v_lshl_add_u32 v{t}, v1, 3, v2", [f"v{t}"]); va(f"v_lshlrev_b32 v{t}, 10, v{t}", [f"v{t}"])
        va(f"v_lshlrev_b32 v{u}, 1, v2", [f"v{u}"]); va(f"v_xor_b32 v{u}, v{u}, v3", [f"v{u}"]); va(f"v_lshl_add_u32 v{WOD}, v{u}, 4, v{t}", [f"v{WOD}"])
        va(f"v_xor_b32 v{WOD+1}, 128, v{WOD}", [f"v{WOD+1}"]); va(f"v_add_u32 v{WOD+1}, {4096-1024}, v{WOD+1}", [f"v{WOD+1}"])
        va(f"v_lshrrev_b32 v{t}, 1, v3", [f"v{t}"]); va(f"v_xor_b32 v{t}, v{t}, v2", [f"v{t}"]); va(f"v_lshlrev_b32 v{t}, 4, v{t}", [f"v{t}"])
        va(f"v_lshl_add_u32 v{t}, v3, 7, v{t}", [f"v{t}"]); va(f"v_lshl_add_u32 v{XA}, v1, 11, v{t}", [f"v{XA}"])
        va(f"v_add_u32 v{XA}, {XBASE}, v{XA}", [f"v{XA}"]); va(f"v_xor_b32 v{XA+1}, 64, v{XA}", [f"v{XA+1}"])
        va(f"v_and_b32 v{t}, 1, v2", [f"v{t}"]); va(f"v_lshrrev_b32 v{u}, 1, v2", [f"v{u}"]); va(f"v_lshl_add_u32 v{t}, v{t}, 1, v{u}", [f"v{t}"])
        va(f"v_xor_b32 v{t}, v{t}, v3", [f"v{t}"]); va(f"v_lshlrev_b32 v{t}, 4, v{t}", [f"v{t}"]); va(f"v_lshl_add_u32 v{KA}, v3, 8, v{t}", [f"v{KA}"])
        for d in range(1, 4): va(f"v_xor_b32 v{KA+d}, {d*64}, v{KA}", [f"v{KA+d}"])
        for i in range(4): va(f"v_mov_b32 v{ONES+i}, 0x3f803f80", [f"v{ONES+i}"])
        va("v_mul_u32_u24 v251, 48, v1", ["v251"]); va("v_add_u32 v251, v251, v3", ["v251"]); va("v_lshlrev_b32 v251, 10, v251", ["v251"]); va("v_lshl_add_u32 v251, v2, 3, v251", ["v251"])
        a(Op("s_waitcnt lgkmcnt(0)", "wait"))
        sa(f"s_add_u32 s{sTAG}, s{sTAG}, 1")
        return o
    def dma(s, S, m0base, ldsaddr, soff_ops, sreg, rsrc, voffs, nt, lds, after=(), earliest=None):
        ops = []
        E = earliest if isinstance(earliest, (list, tuple)) else [earliest] * len(voffs)
        e0 = E[0]
        m = Op(f"s_add_u32 m0, s{m0base}, {ldsaddr}", "salu", wr=["m0"], earliest=None if e0 is None else e0 - 5, latest=None if e0 is None else e0 - 1)
        if e0 is None: S.append(m)
        for t_, wr in soff_ops: S.append(Op(t_, "salu", wr=wr, earliest=None if e0 is None else e0 - 6, latest=None if e0 is None else e0 - 2))
        if e0 is not None: S.append(m)
        for i, v in enumerate(voffs):
            off = f" offset:{1024*i}" if i else ""
            d = Op(f"buffer_load_dwordx4 v{v}, s[{rsrc}:{rsrc+3}], s{sreg} offen{off}{' nt' if nt else ''} lds", "dma",
                   rd=["m0", f"s{sreg}", f"v{v}"], lds_wr=lds, after=after, earliest=E[i], latest=E[i] if isinstance(earliest, (list, tuple)) else None, chain="vm")
            S.append(d); ops.append(d)
        return ops
    def dK(s, S, j, **k): return s.dma(S, sW2K, s.blk[f'k{j}'] * 8192, [(f"s_mov_b32 s{sKO}, {j*8192}", [f"s{sKO}"])], sKO, RK, [KD, KD+1], s.c["kvnt"], [], **k)
    def dV(s, S, j, **k): return s.dma(S, sW2K, s.blk[f'v{j}'] * 8192, [(f"s_mov_b32 s{sVO}, {j*8192}", [f"s{sVO}"])], sVO, RV, [VD, VD+1], s.c["kvnt"], [], **k)
    def dWQ(s, S, st, **k): return s.dma(S, sW4K, WQBASE + wqslot(st), [], WS + st, RWQ, [WQD + i for i in range(4)], s.c["wqnt"], [], **k)
    def dX(s, S, n, **k):
        st, t = divmod(n, 3)
        return s.dma(S, sW2K, XBASE + xslot(n), [(f"s_add_u32 s{sXO}, s{XS+st}, {t*16384}", [f"s{sXO}"])], sXO, RX, [XD, XD+1], False, [f"X{(n+1)%6}"], **k)
    def dWO(s, S, kk, **k):
        return s.dma(S, sW2K, s.blk[f"o{kk}"] * 8192, [(f"s_add_u32 s{sWO}, s{sWOI + kk//4}, {(kk%4)*32768}", [f"s{sWO}"])], sWO, RWO, [WOD, WOD+1], s.c["wont"], [], **k)
    def oepi(s, t, S, check=True):
        st_flag = "" if s.c["local"] else " " + s.c["ost"]
        l = f"v{LS+4*t}"; rc = f"v{LS+4*t+1}"
        S.append(V(f"v_rcp_f32 {rc}, {l}", [rc], [l], kind="trans"))
        if check: S.append(V(f"v_cmp_nge_f32 s[{sCK+2*t}:{sCK+2*t+1}], s{sTHR}, {l}", [f"s{sCK+2*t}", f"s{sCK+2*t+1}"], [l], tag="eager"))
        for sp in range(4):
            dst = OF + (t * 4 + sp) * 4
            for hlf in range(2):
                A = acc(t, 2 * sp + hlf)
                for i in range(4): S.append(V(f"v_mul_f32 v{A+i}, {rc}, v{A+i}", [f"v{A+i}"], [f"v{A+i}", rc], tag="eager"))
                for p in range(2):
                    S.append(V(f"v_cvt_pk_bf16_f32 v{dst+2*hlf+p}, v{A+2*p}, v{A+2*p+1}", [f"v{dst+2*hlf+p}"], [f"v{A+2*p}", f"v{A+2*p+1}"], tag="eager"))
            if sp == 0: S.append(Op(f"s_add_u32 s{sXO}, s{sOST}, {t*4096}", "salu", wr=[f"s{sXO}"]))
            off = f" offset:{sp*1024}" if sp else ""
            o = Op(f"buffer_store_dwordx4 {rng('v', dst, 4)}, v{VL16}, s[{RWS}:{RWS+3}], s{sXO} offen{off}{st_flag}", "store",
                   rd=R("v", dst, 4) + [f"v{VL16}", f"s{sXO}"], chain="vm")
            S.append(o)
            if check: s.ostores.append(o)
    def stream1(s):
        c = s.c; S = []; nm = [0]; ev = []; seq = [0]
        def at(g, fn): heapq.heappush(ev, (g, seq[0], fn)); seq[0] += 1
        def M(op):
            S.append(op); nm[0] += 1
            if nm[0] - 1 in bargaps: return
            while ev and ev[0][0] <= nm[0] - 1: heapq.heappop(ev)[2]()
        XF = lambda n, ks: 64 + n * 8 + ks * 4
        WF = lambda T, ks: T * 8 + ks * 4
        D = {}
        RD = {}
        BAR = {}
        def bar(name, g, vm=(), lg=()):
            b = Op("s_barrier", "bar", earliest=g, latest=g, chain="bar"); b.need_vm = [o for n in vm for o in D[n]]; b.need_lgkm = [o for n in lg for o in RD[n]]
            S.append(b); BAR[name] = b; return b
        def xread(n, e=None):
            RD[f"x{n}"] = [Op(f"ds_read_b128 {rng('a', XF(n, ks), 4)}, v{XA+ks} offset:{xslot(n)}", "ds", rd=[f"v{XA+ks}"], wr=R("a", XF(n, ks), 4),
                              lds_rd=[f"X{(n+1)%6}"], earliest=e) for ks in range(2)]
            S.extend(RD[f"x{n}"])
        def wqread(st, T):
            for ks in range(2):
                for r in range(2):
                    o = Op(f"ds_read_b64_tr_b16 {rng('a', WF(T, ks) + 2*r, 2)}, v{WQA+T} offset:{wqslot(st) + ks*8192 + r*1024}", "ds",
                           rd=[f"v{WQA+T}"], wr=R("a", WF(T, ks) + 2*r, 2), after=[BAR[f"q{st}"]])
                    S.append(o); RD.setdefault(f"wq{st}", []).append(o)
        KF = lambda j, kt, ds: (64 if j == 0 else 0) + (kt * 4 + ds) * 4
        def pin(ops, g0, step=1):
            if g0 is None or not c["pin"]: return
            for i, o in enumerate(ops): o.earliest = o.latest = g0 + i * step
        def kread(j, b, e=None, p=None):
            RD[f"k{j}"] = [Op(f"ds_read_b128 {rng('a', KF(j, kt, ds), 4)}, v{KA+ds} offset:{s.blk[f'k{j}']*8192 + kt*4096}", "ds", rd=[f"v{KA+ds}"],
                              wr=R("a", KF(j, kt, ds), 4), after=[b], earliest=e) for kt in range(2) for ds in range(4)]
            pin(RD[f"k{j}"], p); S.extend(RD[f"k{j}"])
        def vread(j, b, p=None):
            RD[f"v{j}"] = [Op(f"ds_read_b64_tr_b16 {rng('a', 32 + T*4 + 2*r, 2)}, v{VA+T} offset:{s.blk[f'v{j}']*8192 - VBASE + r*4096}", "ds", rd=[f"v{VA+T}"],
                              wr=R("a", 32 + T*4 + 2*r, 2), after=[b]) for T in range(8) for r in range(2)]
            pin(RD[f"v{j}"], p); S.extend(RD[f"v{j}"])
        bp = c["bpos"]
        bq = lambda st: -1 if st == 0 else (st - 1) * 48 + bp
        A0 = 384
        it0 = lambda j: A0 + 24 + 51 * j
        battn = lambda j: it0(j) + 33
        NG = it0(15) + 27
        gb = lambda nme: bq(int(nme[1:])) if nme[0] == "q" else battn(int(nme[1:]))
        bars = [f"q{i}" for i in range(1, 8)] + [f"a{j}" for j in range(15)]
        init = c.get("init", ["wq0", "x0", "x1", "x2", "x3", "x4", "x5", "wq1", "k0", "k1", "v0", "wq2"])
        slots = list(range(1, it0(0) + 30, c["sp"])) + [it0(j) + o for j in range(15) for o in c["slot_att"] if it0(j) + o >= it0(0) + 30] + list(range(it0(15) + 1, NG, c["sp"]))
        slots.sort()
        xdl = lambda n: 48 * (n // 3) - 8 + 2 * (n % 3)
        xrd = {n: (-1 if n < 3 else min(c["x345"] + 2 * (n - 3), xdl(n))) for n in range(6)}
        free = {b_: (-1, None) for b_ in (0, 1, 2, 3, 4, 17, 18, 19)}
        free.update({5: (bq(6), "q6"), 6: (bq(6), "q6"), 7: (bq(7), "q7"), 8: (bq(7), "q7"), 9: (battn(0), "a0"), 10: (battn(0), "a0")})
        xfree = {}
        def xdead(n):
            nb = next(x for x in bars if gb(x) >= xrd[n] + 10); xfree[n] = nb; free[11 + (n + 1) % 6] = (gb(nb), nb)
        s.blk = {}
        kvorder = ["k0", "k1", "v0"] + [x for j in range(1, 15) for x in (f"k{j+1}", f"v{j}")] + ["v15"]
        def take(nme, g):
            cand = [b_ for b_ in (range(8) if nme[0] == "k" else range(19, 11, -1)) if b_ in free and free[b_][0] <= g]
            if not cand: return None
            b_ = cand[0]; dep = free[b_][1]; j = int(nme[1:]); s.blk[nme] = b_
            fb = max(0, j - 1) if nme[0] == "k" else j
            if fb < 15: free[b_] = (battn(fb), f"a{fb}")
            else: del free[b_]
            return (dep,)
        head = []
        for it in init:
            if it[0] in "kv": take(it, -1)
            f = {"w": s.dWQ, "x": s.dX, "k": s.dK, "v": s.dV}[it[0]]
            head.append([]); D[it] = f(head[-1], int(it.lstrip("wqxkv")))
        s.headgroups = head
        plan = []
        qwq = [st for st in range(8) if f"wq{st}" not in init]; qx = list(range(6, 24)); qkv = [x for x in kvorder if x not in init]
        qwo = list(range(16))
        forced = [tuple(x) for x in c.get("forced", [])]
        nkv = 0; lastkv = -99; lastwo = -99; i = 0
        while i < len(slots) and (qwq or qx or qkv or qwo):
            g = slots[i]; pick = None
            if forced and g >= forced[0][1]:
                nme = forced.pop(0)[0]; qkv.remove(nme); take(nme, g); pick = (nme, 2, None)
            elif qwq and bq(max(0, qwq[0] - 2)) < g: st = qwq.pop(0); pick = (f"wq{st}", 4, f"q{st-2}" if st > 2 else None)
            elif qx and xrd[qx[0] - 6] + 7 <= g:
                n = qx.pop(0); pick = (f"x{n}", 2, None); xrd[n] = min(xdl(n), slots[i + 1] + c["xlat"])
                if n >= 18: xdead(n)
            need = lambda x: battn(max(0, int(x[1:]) - (2 if x[0] == "k" else 1)))
            if pick is None and qkv and g >= c["kvstart"] and (nkv < c["kvburst"] + (g - c["kvstart"]) / c["kvgap"] or g >= need(qkv[0]) - c.get("kvlead", 170)):
                dep = take(qkv[0], g)
                if dep: pick = (qkv.pop(0), 2, dep[0]); nkv += 1; lastkv = g
            if pick is None and qwo and g >= it0(0) + c["wostart"] and i + 1 < len(slots) and g >= lastwo + c["wogap"]:
                nk = sum(x[0] == "k" for x in qkv); nv_ = sum(x[0] == "v" for x in qkv)
                for b_ in (8, 9, 10, 11, 7, 12, 6, 13, 5, 14, 4, 15, 3, 16, 2, 17, 1, 18, 0, 19):
                    if b_ not in free or free[b_][0] > g: continue
                    if not 8 <= b_ < 12:
                        left = [x for x in free if (x < 8) == (b_ < 8) and not 8 <= x < 12 and x != b_]
                        if len(left) < min(c["kvkeep"], 2 + (nk if b_ < 8 else nv_)) and (nk if b_ < 8 else nv_): continue
                    kk = qwo.pop(0); s.blk[f"o{kk}"] = b_; pick = (f"o{kk}", 2, free[b_][1]); del free[b_]; lastwo = g; break
            if pick is None: i += 1; continue
            plan.append((pick[0], slots[i:i + pick[1]], pick[2])); i += pick[1]
        assert not (qwq or qx or qkv), (qwq, qx, qkv)
        s.wo_left = qwo; s.plan = plan; s.xrd = xrd
        bar("q0", -1, vm=["wq0"])
        for n in range(3): xread(n, -1)
        for T in range(8): wqread(0, T)
        for n in range(3, 24): at(xrd[n], lambda n=n: xread(n, xrd[n]))
        for nme, gs, dep in plan:
            def f(nme=nme, gs=gs, dep=dep):
                kw = dict(after=[BAR[dep]] if dep else [], earliest=list(gs))
                n = int(nme.lstrip("wqxkvot"))
                D[nme] = {"w": s.dWQ, "x": s.dX, "k": s.dK, "v": s.dV, "o": s.dWO}[nme[0]](S, n, **kw)
            at(gs[0], f)
        s.D = D
        bargaps = {gb(x) for x in bars}
        def qepi(t):
            for ds in range(4):
                for hlf in range(2):
                    A = acc(t, 2 * ds + hlf)
                    for i in range(4): S.append(V(f"v_mul_f32 v{A+i}, s{sSC}, v{A+i}", [f"v{A+i}"], [f"v{A+i}"], tag="eager"))
                    for p in range(2):
                        q = QF + (t * 4 + ds) * 4 + 2 * hlf + p
                        S.append(V(f"v_cvt_pk_bf16_f32 v{q}, v{A+2*p}, v{A+2*p+1}", [f"v{q}"], [f"v{A+2*p}", f"v{A+2*p+1}"], tag="eager"))
                q = QF + (t * 4 + ds) * 4
                for p in range(2): S.append(V(f"v_permlane16_swap_b32 v{q+p}, v{q+2+p}", [f"v{q+p}", f"v{q+2+p}"], [f"v{q+p}", f"v{q+2+p}"], kind="perm"))
        for st in range(8):
            order = [(T, t) for T in range(8) for t in range(3)] if st < 7 else [(T, t) for t in range(3) for T in range(8)]
            for k, (T, t) in enumerate(order):
                for ks in range(2):
                    M(mfma(("v", acc(t, T)), ("a", WF(T, ks)), ("a", XF(st * 3 + t, ks)), None if st == 0 and ks == 0 else ("v", acc(t, T))))
                    if st < 7 and nm[0] - 1 == bq(st + 1):
                        lg = [f"wq{st}"] + [f"x{n}" for n in xfree if xfree[n] == f"q{st+1}"]
                        bar(f"q{st+1}", bq(st + 1), vm=[f"wq{st+1}"] + (["k0", "k1", "v0"] if st == 6 else []), lg=lg)
                        while ev and ev[0][0] <= nm[0] - 1: heapq.heappop(ev)[2]()
                if st == 7 and T == 7: qepi(t)
            if st < 7:
                for T in range(8): wqread(st + 1, T)
            if st == 6: kread(0, BAR["q7"], e=7 * 48 + 8)
        kread(1, BAR["q7"]); vread(0, BAR["q7"])
        def qk(j, t):
            for kt in range(2):
                for ds in range(4):
                    cc = ("v", sS(t, kt)) if ds else (None if j == 0 else ("v", NM + 4 * t))
                    M(mfma(("v", sS(t, kt)), ("a", KF(j, kt, ds)), ("v", QF + (t * 4 + ds) * 4), cc))
        def firstmax(t):
            r = [f"v{sS(t, 0) + i}" for i in range(8)]; m, tm = f"v{2*t}", f"v{2*t+1}"
            S.append(V(f"v_max3_f32 {m}, {r[0]}, {r[1]}, {r[2]}", [m], r[0:3]))
            S.append(V(f"v_max3_f32 {m}, {m}, {r[3]}, {r[4]}", [m], [m] + r[3:5]))
            S.append(V(f"v_max3_f32 {m}, {m}, {r[5]}, {r[6]}", [m], [m] + r[5:7]))
            S.append(V(f"v_max_f32 {m}, {m}, {r[7]}", [m], [m, r[7]]))
            for sw in ("16", "32"):
                S.append(V(f"v_mov_b32 {tm}, {m}", [tm], [m]))
                S.append(V(f"v_permlane{sw}_swap_b32 {m}, {tm}", [m, tm], [m, tm], kind="perm"))
                S.append(V(f"v_max_f32 {m}, {m}, {tm}", [m], [m, tm]))
            for i in range(4): S.append(V(f"v_sub_f32 v{NM+4*t+i}, 0, {m}", [f"v{NM+4*t+i}"], [m]))
            for x in r: S.append(V(f"v_sub_f32 {x}, {x}, {m}", [x], [x, m]))
            for o in S[-22:]: o.tag = "eager"
        def softmax(j, t, pe=None, pc=None):
            E = [V(f"v_exp_f32 v{x}, v{x}", [f"v{x}"], [f"v{x}"], kind="trans") for x in range(sS(t, 0), sS(t, 0) + 8)]
            C = [V(f"v_cvt_pk_bf16_f32 v{PP+4*t+p}, v{sS(t, 0)+2*p}, v{sS(t, 0)+2*p+1}", [f"v{PP+4*t+p}"], [f"v{sS(t, 0)+2*p}", f"v{sS(t, 0)+2*p+1}"]) for p in range(4)]
            pin(E, pe)
            if isinstance(pc, tuple) and c["pin"]:
                for o, g_ in zip(C, pc): o.earliest = o.latest = g_
            else: pin(C, pc)
            if pe is None:
                for o in C: o.tag = "eager"
            S.extend(E + C)
        def pv(j, t):
            M(mfma(("v", LS + 4 * t), ("v", ONES), ("v", PP + 4 * t), ("v", LS + 4 * t) if j else None))
            for T in range(8): M(mfma(("v", acc(t, T)), ("a", 32 + T * 4), ("v", PP + 4 * t), ("v", acc(t, T)) if j else None))
        s.ostores = []
        oepi = lambda t: s.oepi(t, S)
        for t in range(3): qk(0, t); firstmax(t); softmax(0, t)
        for j in range(16):
            for t in range(3):
                if t == 2 and j < 15:
                    vm = ([f"k{j+2}"] if j < 14 else []) + [f"v{j+1}"]
                    lg = [f"k{j+1}", f"v{j}"] + (["k0", "wq7"] if j == 0 else []) + [f"x{n}" for n in xfree if xfree[n] == f"a{j}"]
                    bar(f"a{j}", battn(j), vm=vm, lg=lg)
                    while ev and ev[0][0] <= nm[0] - 1: heapq.heappop(ev)[2]()
                if j < 15: qk(j + 1, t)
                g0 = it0(j)
                if t == 2 and j < 14: kread(j + 2, BAR[f"a{j}"], p=g0 + 34)
                pv(j, t)
                if j < 15:
                    steady = j >= 1
                    if t == 0: softmax(j + 1, t, *((g0 + 8, tuple(g0 + x for x in (36, 38, 39, 40))) if steady else ()))
                    elif t == 1: softmax(j + 1, t, *((g0 + 25, tuple(g0 + x for x in (43, 44, 46, 47))) if steady and j < 14 else ((g0 + 25, None) if steady else ())))
                    else: softmax(j + 1, t, *((g0 + 51 + 16, tuple(g0 + 51 + x for x in (24, 24, 34, 35))) if j < 14 else ()))
                else: oepi(t)
            if j < 15: vread(j + 1, BAR[f"a{j}"], p=it0(j) + 43 if j < 14 else None)
        assert not ev, ev
        return S
    def stream2(s):
        c = s.c
        ring = [("a", 16 * i) for i in range(4)] + [("a", 208 + 16 * i) for i in range(3)] + [("v", QF + 16 * i) for i in range(3)]
        rp = [0]; U = {}
        OB = lambda i, t, sp: ("v", OF + (t * 4 + sp) * 4) if i == 0 else ("a", 64 + ((i - 1) * 12 + t * 4 + sp) * 4)
        def unit(S, i, T, after=()):
            p, r0 = U[i, T] = ring[rp[0] % len(ring)]; rp[0] += 1
            for sp in range(4):
                ad = s.blk[f"o{4*i+sp}"] * 8192
                for r in range(2):
                    S.append(Op(f"ds_read_b64_tr_b16 {rng(p, r0 + 4*sp + 2*r, 2)}, v{WA + 8*(ad >> 16) + T} offset:{(ad & 65535) + r*4096}", "ds",
                                rd=[f"v{WA + 8*(ad >> 16) + T}"], wr=R(p, r0 + 4*sp + 2*r, 2), after=after))
        def chain(S, i, T, t):
            p, r0 = U[i, T]
            for sp in range(4): S.append(mfma(("v", acc(t, T)), (p, r0 + 4 * sp), OB(i, t, sp), None if i == 0 and sp == 0 else ("v", acc(t, T))))
        def oload(i, t, dst, g=None):
            dst.append(Op(f"s_add_u32 s{sXO}, s{sOLD+i}, {t*4096}", "salu", wr=[f"s{sXO}"], earliest=None if g is None else g - 3, latest=None if g is None else g - 1))
            for sp in range(4):
                p, r = OB(i, t, sp); off = f" offset:{sp*1024}" if sp else ""; e = None if g is None else g + 4 * sp
                dst.append(Op(f"buffer_load_dwordx4 {rng(p, r, 4)}, v{VL16}, s[{RWS}:{RWS+3}], s{sXO} offen{off} sc1", "load",
                              rd=[f"v{VL16}", f"s{sXO}"], wr=R(p, r, 4), chain="vm", sub=1, earliest=e, latest=e))
        pre = [Op(f"s_lshl_b32 s{sT1}, s{sHQ}, 5", "salu", wr=[f"s{sT1}"]), V(f"v_subrev_u32 v240, {VBASE}, v{VA}", ["v240"], [f"v{VA}"]),
               V(f"v_xor_b32 v240, s{sT1}, v240", ["v240"], ["v240"])]
        for wdw in range(3):
            for T in range(8):
                r = WA + 8 * wdw + T
                pre.append(V(f"v_xor_b32 v{r}, {T*32}, v240", [f"v{r}"], ["v240"]) if wdw == 0 else V(f"v_add_u32 v{r}, 65536, v{r-8}", [f"v{r}"], [f"v{r-8}"]))
        s.pre2 = pre
        R0 = []
        for T in range(8):
            unit(R0, 0, T)
            for t in range(3): chain(R0, 0, T, t)
        for T in range(4): unit(R0, 1, T)
        for T in range(1, 8):
            R0 += [Op(f"s_xor_b32 s{sT1}, s{sHQ}, {T}", "salu", wr=[f"s{sT1}"]), Op(f"s_sub_i32 s{sT1}, s{sT1}, s{sHQ}", "salu", rd=[f"s{sT1}"], wr=[f"s{sT1}"]),
                   Op(f"s_mul_i32 s{sT1}, s{sT1}, {16*10752}", "salu", rd=[f"s{sT1}"], wr=[f"s{sT1}"]),
                   Op(f"s_add_u32 s{sT1}, s{sT1}, s{sPL}", "salu", rd=[f"s{sT1}"], wr=[f"s{sT1}"]),
                   Op(f"s_add_u32 s{sPS+T-1}, s{sT1}, {(T-1)*1536}", "salu", rd=[f"s{sT1}"], wr=[f"s{sPS+T-1}"])]
        R0.append(V(f"v_lshrrev_b32 v241, 1, v{VL16}", ["v241"], []))
        s.R0 = R0
        S = []; s.ld2 = []
        oi = c.get("oinit", 2)
        seq = [(1, 0), (1, 1), (1, 2), (2, 0), (3, 0), (2, 1), (3, 1), (2, 2), (3, 2)]
        for i, t in seq[:oi]: oload(i, t, s.ld2)
        for n, (i, t) in enumerate(seq[oi:]): oload(i, t, S, 1 + 16 * n)
        for t in range(3):
            for T in range(4): chain(S, 1, T, t)
            if t == 0:
                for T in range(4, 8): unit(S, 1, T)
        g1 = list(range(1, 1 + c.get("g1", 3)))
        for T in range(4, 8):
            for t in range(3): chain(S, 1, T, t)
            if T == 4:
                unit(S, 2, g1[0]); unit(S, 3, g1[0])
        s.pstores = []
        def publish(T, t):
            A = acc(0, T) if t < 2 else acc(2, T); src = acc(t, T); d = A + (2 if t == 1 else 0)
            for p in range(2): S.append(V(f"v_cvt_pk_bf16_f32 v{d+p}, v{src+2*p}, v{src+2*p+1}", [f"v{d+p}"], [f"v{src+2*p}", f"v{src+2*p+1}"]))
            if t == 1: o = Op(f"buffer_store_dwordx4 {rng('v', A, 4)}, v{VL16}, s[{RWS}:{RWS+3}], s{sPS+T-1} offen sc1", "store", rd=R("v", A, 4), chain="vm")
            elif t == 2: o = Op(f"buffer_store_dwordx2 {rng('v', A, 2)}, v241, s[{RWS}:{RWS+3}], s{sPS+T-1} offen offset:1024 sc1", "store", rd=R("v", A, 2), chain="vm")
            else: return
            S.append(o); s.pstores.append(o)
        for T in g1[1:]: unit(S, 2, T); unit(S, 3, T)
        for t in range(3):
            for T in g1:
                chain(S, 2, T, t); chain(S, 3, T, t); publish(T, t)
        rest = [T for T in range(1, 8) if T not in g1] + [0]
        for T in rest:
            unit(S, 2, T); unit(S, 3, T)
            for t in range(3):
                chain(S, 2, T, t); chain(S, 3, T, t)
                if T: publish(T, t)
        F = []
        for T in range(1, 8):
            r = OF + (T - 1) * 6 + ((T - 1) & 1) * 0
            RA_, RB_ = OF + (T - 1) * 4, OF + 28 + (T - 1) * 2
            so = f"s{sPL}"
            F.append(Op(f"s_add_u32 s{sXO}, s{sPL}, {(T-1)*1536}", "salu", wr=[f"s{sXO}"]))
            F.append(Op(f"buffer_load_dwordx4 {rng('v', RA_, 4)}, v{VL16}, s[{RWS}:{RWS+3}], s{sXO} offen sc1", "load", rd=[f"s{sXO}"], wr=R("v", RA_, 4)))
            F.append(Op(f"buffer_load_dwordx2 {rng('v', RB_, 2)}, v241, s[{RWS}:{RWS+3}], s{sXO} offen offset:1024 sc1", "load", rd=[f"s{sXO}"], wr=R("v", RB_, 2)))
        tmp = QF
        for T in range(1, 8):
            RA_, RB_ = OF + (T - 1) * 4, OF + 28 + (T - 1) * 2
            for t in range(3):
                for p in range(2):
                    src = RA_ + 2 * t + p if t < 2 else RB_ + p; A = acc(t, 0) + 2 * p; x = tmp + ((T * 6 + t * 2 + p) % 8) * 2
                    F.append(V(f"v_lshlrev_b32 v{x}, 16, v{src}", [f"v{x}"], [f"v{src}"]))
                    F.append(V(f"v_and_b32 v{x+1}, 0xffff0000, v{src}", [f"v{x+1}"], [f"v{src}"]))
                    F.append(V(f"v_pk_add_f32 v[{A}:{A+1}], v[{A}:{A+1}], v[{x}:{x+1}]", R("v", A, 2), R("v", A, 2) + R("v", x, 2)))
        for t in range(3):
            A = acc(t, 0)
            for p in range(2): F.append(V(f"v_cvt_pk_bf16_f32 v{A+p}, v{A+2*p}, v{A+2*p+1}", [f"v{A+p}"], [f"v{A+2*p}", f"v{A+2*p+1}"]))
            F.append(Op(f"s_mov_b32 s{sKO}, {t*16384}", "salu", wr=[f"s{sKO}"]))
            F.append(Op(f"buffer_store_dwordx2 {rng('v', A, 2)}, v251, s[{ROUT}:{ROUT+3}], s{sKO} offen", "store", rd=R("v", A, 2) + ["v251", f"s{sKO}"]))
        s.fin2 = F
        return S
    def slowpath(s):
        L = []; a = L.append
        raw = lambda t, kind="salu", **k: a(Op(t, kind, **k))
        va = lambda t, wr, rd=(), **k: a(V(t, wr, rd, **k))
        a(Op("L_slow:", "label")); w = Op("s_waitcnt vmcnt(0) lgkmcnt(0)", "wait"); w.waitall = True; a(w)
        ln, g, i_ = "v0", "v1", "v2"
        va(f"v_lshrrev_b32 v0, 4, v{VL16}", [ln]); va("v_lshrrev_b32 v1, 4, v0", [g]); va("v_and_b32 v2, 15, v0", [i_])
        va("v_and_b32 v3, 1, v1", ["v3"]); va("v_lshrrev_b32 v4, 1, v1", ["v4"]); va("v_lshl_add_u32 v3, v3, 1, v4", ["v3"])
        va("v_lshlrev_b32 v3, 4, v3", ["v3"]); va(f"v_lshl_add_u32 v{KA}, v2, 8, v3", [f"v{KA}"])
        va("v_lshlrev_b32 v3, 1, v1", ["v3"]); va("v_xor_b32 v3, v3, v2", ["v3"]); va("v_lshlrev_b32 v3, 4, v3", ["v3"])
        va(f"v_lshl_add_u32 v{VD}, v1, 8, v3", [f"v{VD}"]); va(f"v_xor_b32 v{VD+1}, 128, v{VD}", [f"v{VD+1}"])
        sp_ = s.spare
        raw(f"s_mov_b32 s{sVO}, {sp_[0]*8192}")
        for w_ in range(1, 4): raw(f"s_cmp_eq_u32 s{sW}, {w_}"); raw(f"s_cselect_b32 s{sVO}, {sp_[w_]*8192}, s{sVO}")
        raw(f"s_sub_u32 s{sT3}, s{sVO}, {VBASE}")
        for T in range(8): va(f"v_add_u32 v{232+T}, s{sT3}, v{VA+T}", [f"v{232+T}"])
        def kload():
            raw(f"s_add_u32 s{sT2}, s{sT1}, 4096", wr=[f"s{sT2}"])
            for kt in range(2):
                for ds in range(4):
                    a(Op(f"buffer_load_dwordx4 {rng('a', (kt*4+ds)*4, 4)}, v{KA}, s[{RK}:{RK+3}], s{(sT1, sT2)[kt]} offen offset:{ds*64}", "load", wr=R("a", (kt*4+ds)*4, 4)))
        def qk(cneg):
            for t in range(3):
                for kt in range(2):
                    for ds in range(4):
                        a(mfma(("v", sS(t, kt)), ("a", (kt*4+ds)*4), ("v", QF + (t*4+ds)*4), ("v", sS(t, kt)) if ds else (("v", NM + 4*t) if cneg else None)))
        def loop(lbl):
            raw("s_nop 7"); raw(f"s_add_u32 s{sT1}, s{sT1}, 8192"); raw(f"s_cmp_lt_u32 s{sT1}, 0x20000"); a(Op(f"s_cbranch_scc1 {lbl}", "branch"))
        for t in range(3): va(f"v_mov_b32 v{t}, 0xff800000", [f"v{t}"])
        raw(f"s_mov_b32 s{sT1}, 0"); a(Op("L_s1:", "label")); kload(); qk(False)
        for t in range(3):
            r = [f"v{sS(t, 0)+i}" for i in range(8)]
            for p in range(4): va(f"v_max3_f32 v{t}, v{t}, {r[2*p]}, {r[2*p+1]}", [f"v{t}"], [f"v{t}", r[2*p], r[2*p+1]])
        loop("L_s1")
        for t in range(3):
            m, tm = f"v{t}", "v3"
            for sw in ("16", "32"):
                va(f"v_mov_b32 {tm}, {m}", [tm], [m]); va(f"v_permlane{sw}_swap_b32 {m}, {tm}", [m, tm], [m, tm], kind="perm"); va(f"v_max_f32 {m}, {m}, {tm}", [m], [m, tm])
            for i in range(4): va(f"v_sub_f32 v{NM+4*t+i}, 0, {m}", [f"v{NM+4*t+i}"], [m])
        for r in range(ACC, LS + 12): va(f"v_mov_b32 v{r}, 0", [f"v{r}"])
        raw(f"s_mov_b32 s{sT1}, 0"); a(Op("L_s2:", "label")); kload()
        for hf in range(2):
            raw(f"s_add_u32 m0, s{sVO}, {hf*4096}", wr=["m0"])
            for i in range(4):
                a(Op(f"buffer_load_dwordx4 v{VD+(i&1)}, s[{RV}:{RV+3}], s{(sT1, sT2)[hf]} offen offset:{i*1024} lds", "dma", rd=["m0"], lds_wr=["SV"]))
        qk(True)
        for t in range(3):
            for i in range(8): va(f"v_exp_f32 v{sS(t,0)+i}, v{sS(t,0)+i}", [f"v{sS(t,0)+i}"], [f"v{sS(t,0)+i}"], kind="trans")
            for p in range(4): va(f"v_cvt_pk_bf16_f32 v{PP+4*t+p}, v{sS(t,0)+2*p}, v{sS(t,0)+2*p+1}", [f"v{PP+4*t+p}"], [f"v{sS(t,0)+2*p}", f"v{sS(t,0)+2*p+1}"])
        for T in range(8):
            for r in range(2):
                a(Op(f"ds_read_b64_tr_b16 {rng('a', 32+T*4+2*r, 2)}, v{232+T} offset:{r*4096}", "ds", rd=[f"v{232+T}"], wr=R("a", 32+T*4+2*r, 2), lds_rd=["SV"]))
        for t in range(3):
            a(mfma(("v", LS+4*t), ("v", ONES), ("v", PP+4*t), ("v", LS+4*t)))
            for T in range(8): a(mfma(("v", acc(t, T)), ("a", 32+T*4), ("v", PP+4*t), ("v", acc(t, T))))
        loop("L_s2")
        for t in range(3): s.oepi(t, L, check=False)
        a(Op("s_waitcnt vmcnt(0) lgkmcnt(0)", "wait")); a(Op("s_branch L_back", "branch"))
        L = insert_waits(L, hoist=False); L, _ = insert_nops(L)
        return L
    def stamp(s, name):
        if not s.c["stamps"]: return []
        k = len(s.names); s.names.append(name)
        return [Op(f"v_writelane_b32 v252, s{STAMP}, {k-1}", "valu", tag="st"), Op(f"{s.c.get('clk', 's_memrealtime')} s[{STAMP}:{STAMP+1}]", "salu", tag="st")]
    def build(s):
        c = s.c
        S1 = s.stream1(); P1 = schedule(S1)
        used = {s.blk[f"o{kk}"] for kk in range(16) if f"o{kk}" in s.blk}
        fr = [b_ for b_ in range(20) if b_ not in used]
        late = []
        for kk in s.wo_left: s.blk[f"o{kk}"] = fr.pop(); late.append(kk)
        assert all(kk >= 8 for kk in late)
        s.spare = fr[:4]
        SLOW = s.slowpath() if c["slow"] else []
        S2 = s.stream2(); P0 = schedule(s.R0); P2 = schedule(S2, mlat=7)
        s.names = ["start"]
        hd = s.headgroups
        L = s.prologue() + sum(hd[:c["nhead1"]], []) + s.stamp("iss1") + s.prologue2() + s.stamp("pro2") + sum(hd[c["nhead1"]:], []) + s.stamp("issued")
        n = 0; nb = 0
        for o in P1:
            if o.kind == "mfma":
                if n == 384: L += s.stamp("att0")
                n += 1
                if n == 384 + 24 + 15 * 51 + 27: L.append(o); L += s.stamp("lastpv"); continue
            L.append(o)
            if o.kind == "bar": L += s.stamp(f"b{nb}"); nb += 1
        L += s.stamp("epi")
        raw = lambda t, kind="salu", **k: Op(t, kind, **k)
        bb = Op("s_barrier", "bar"); bb.need_vm = [o for kk in range(8) for o in s.D[f"o{kk}"]]
        L += [raw("s_waitcnt lgkmcnt(0)", "wait"), bb]
        if c["slow"]:
            L += [Op(f"s_or_b64 s[{sCK}:{sCK+1}], s[{sCK}:{sCK+1}], s[{sCK+2}:{sCK+3}]", "salu", rd=R("s", sCK, 4)),
                  Op(f"s_or_b64 s[{sCK}:{sCK+1}], s[{sCK}:{sCK+1}], s[{sCK+4}:{sCK+5}]", "salu", rd=R("s", sCK, 6)),
                  Op("s_cbranch_scc1 L_slow", "branch"), Op("L_back:", "label")]
        for kk in late: s.dWO(L, kk)
        def signal_and_wait(name, stores, sline, sidx, n):
            fl = Op("s_nop 0", "salu"); fl.need_vm = list(stores)
            o = [raw(f"s_lshl_b32 s{sT1}, s{sidx}, 2"), V(f"v_mov_b32 v7, s{sT1}", ["v7"], []), fl, raw("s_mov_b64 exec, 1"),
                 Op(f"buffer_store_dword v6, v7, s[{RWS}:{RWS+3}], s{sline} offen sc1", "store", rd=["v6", "v7"])]
            o += s.stamp("fl" + name)
            o += [raw(f"s_mov_b64 exec, {(1 << n) - 1}"), raw(f"s_mov_b32 s{sT1}, 0"), Op(f"L_poll{name}:", "label"),
                  Op(f"buffer_load_dword v5, v4, s[{RWS}:{RWS+3}], s{sline} offen sc1", "load", rd=["v4"], wr=["v5"])]
            w = raw("s_waitcnt vmcnt(0)", "wait"); w.waitall = "vm"
            o += [w, V(f"v_cmp_ne_u32 vcc, s{sTAG}, v5", ["vcc"], []), raw(f"s_add_u32 s{sT1}, s{sT1}, 1"), raw("s_nop 2"),
                  Op(f"s_cbranch_vccz L_go{name}", "branch"), raw(f"s_cmp_lt_u32 s{sT1}, 0x40000"), Op(f"s_cbranch_scc1 L_poll{name}", "branch"),
                  Op(f"L_go{name}:", "label"), raw("s_mov_b64 exec, -1")]
            return o + s.stamp("go" + name)
        L += s.pre2 + [V(f"v_mov_b32 v6, s{sTAG}", ["v6"], []), V(f"v_lshrrev_b32 v4, 2, v{VL16}", ["v4"], [f"v{VL16}"])]
        L += s.stamp("r0") + P0 + s.stamp("r0e") + signal_and_wait("1", s.ostores, sF1, sJ, 4)
        L += s.ld2 + [Op("s_barrier", "bar")]
        n = 0
        for o in P2:
            if o.kind == "mfma":
                if n % 48 == 0: L += s.stamp(f"h{n//48}")
                n += 1
            L.append(o)
        L += s.stamp("p2end") + signal_and_wait("2", s.pstores, sF2, sHQ, 8) + s.fin2
        L += [raw(f"s_or_b32 s{sT1}, s2, s{sW}"), raw(f"s_cmp_lg_u32 s{sT1}, 0"), Op("s_cbranch_scc1 L_fin", "branch"),
              V(f"v_lshlrev_b32 v0, 5, v{VL16}", ["v0"], []), V("v_mov_b32 v7, 0", ["v7"], []), raw(f"s_mov_b32 s{sT2}, {F1_OFF}"),
              raw(f"s_mov_b32 s{sT1}, 0"), Op("L_pollg:", "label"),
              Op(f"buffer_load_dwordx4 v[60:63], v0, s[{RWS}:{RWS+3}], s{sT2} offen sc1", "load", rd=["v0"], wr=R("v", 60, 4))]
        w = raw("s_waitcnt vmcnt(0)", "wait"); w.waitall = True
        L += [w] + [V(f"v_xor_b32 v{60+i}, s{sTAG}, v{60+i}", [f"v{60+i}"], []) for i in range(4)]
        L += [V("v_or3_b32 v60, v60, v61, v62", ["v60"], []), V("v_or_b32 v60, v60, v63", ["v60"], []), V("v_cmp_ne_u32 vcc, 0, v60", ["vcc"], []),
              raw(f"s_add_u32 s{sT1}, s{sT1}, 1"), raw("s_nop 2"), Op("s_cbranch_vccz L_gog", "branch"), raw(f"s_cmp_lt_u32 s{sT1}, 0x40000"), Op("s_cbranch_scc1 L_pollg", "branch"),
              Op("L_gog:", "label"), raw(f"s_mov_b32 s{sT1}, {GEN_OFF}"), raw("s_mov_b64 exec, 1"),
              Op(f"buffer_store_dword v6, v7, s[{RWS}:{RWS+3}], s{sT1} offen sc1", "store", rd=["v6", "v7"]), raw("s_mov_b64 exec, -1"), Op("L_fin:", "label")]
        if c["stamps"]:
            L += [raw("s_waitcnt vmcnt(0)", "wait")] + s.stamp("end") + [raw("s_waitcnt lgkmcnt(0)", "wait")] + s.stamp("x")[:1]
            s.names.pop()
            L += [raw(f"s_cmp_lg_u32 s{sW}, {c.get('stw', 0)}"), Op("s_cbranch_scc1 L_end", "branch"),
                  raw(f"s_mov_b32 s{RWS+2}, 0x10000000"),
                  raw(f"s_lshl_b32 s{sT1}, s2, 8"), raw(f"s_add_u32 s{sT1}, s{sT1}, {STAMP_OFF}"),
                  Op(f"buffer_store_dword v252, v4, s[{RWS}:{RWS+3}], s{sT1} offen", "store", rd=["v252"])]
        L += [Op("L_end:", "label"), Op("s_endpgm", "branch"), Op("L_codeend:", "label")]
        L = insert_waits(L)
        log = []; L, nn = insert_nops(L, log)
        s.nmain = len(L); L += SLOW
        s.log = log; s.L = L
        return L
    def text(s):
        L = s.build()
        hdr = open("standalone__mha_block_cached__near_ridge.s.ref").read().split("; Override")[0]
        t = hdr + ("; stamps: " + " ".join(s.names) + "\n" if s.c["stamps"] else "") + "; @launch grid=(256,1,1) block=(256,1,1) lds=163840\n"
        t += f'.amdgcn_target "amdgcn-amd-amdhsa--gfx950"\n.text\n.globl {KN}\n.p2align 8\n.type {KN},@function\n{KN}:\n'
        t += "".join((o.text if o.kind == "label" else "    " + o.text) + "\n" for o in L)
        t += (f'.section .rodata,"a"\n.p2align 6\n.amdhsa_kernel {KN}\n  .amdhsa_next_free_vgpr 512\n  .amdhsa_next_free_sgpr 102\n  .amdhsa_accum_offset 256\n'
              "  .amdhsa_group_segment_fixed_size 0\n  .amdhsa_kernarg_size 64\n  .amdhsa_user_sgpr_count 2\n  .amdhsa_user_sgpr_kernarg_segment_ptr 1\n"
              "  .amdhsa_system_sgpr_workgroup_id_x 1\n.end_amdhsa_kernel\n")
        return t

if __name__ == "__main__":
    out = sys.argv[1]; cfg = json.loads(sys.argv[2]) if len(sys.argv) > 2 else {}
    g = Gen(**cfg); t = g.text(); open(out, "w").write(t)
    print(" ".join(f"{n}@{gs[0]}" for n, gs, d in g.plan)); print("xrd", g.xrd, "blk", g.blk, "left", g.wo_left, "spare", g.spare)
    L = g.L[:g.nmain]; mi = [i for i, o in enumerate(L) if o.kind == "mfma"]
    n1 = 384 + 24 + 15 * 51 + 27
    print("ops", len(L), "mfma", len(mi), "nops", g.log[:40], len(g.log))
    print("est cycles: qproj", estimate(L[mi[0]:mi[384]]), "attn", estimate(L[mi[384]:mi[n1 - 1] + 1]), "attn tail", estimate(L[mi[n1-1]:mi[n1]]),
          "r0", estimate(L[mi[n1]:mi[n1+95] + 1]), "r1-3", estimate(L[mi[n1+96]:mi[-1] + 1]), "tail", estimate(L[mi[-1]:]))
```

```python
import sys, heapq, struct, json
from sched import *

KN = "standalone__mha_block_cached__near_ridge_kernel"
fbits = lambda x: struct.unpack("<I", struct.pack("<f", x))[0]

ACC, LS, QF, SS, PP, NM, ONES = 8, 104, 116, 164, 188, 200, 212
KA, VA, KD, VD, WOD = 216, 220, 228, 230, 244
WA = 216
VL16 = 248
WQA, XA, XD, WQD = 188, 196, 200, 204
T0 = 0
acc = lambda t, T: ACC + (t * 8 + T) * 4
sS = lambda t, kt: SS + (t * 2 + kt) * 4
sB, sH, sW, sROT = 20, 21, 22, 23
RX, RWQ, RK, RV, RWO, RWS, ROUT = 24, 28, 32, 36, 40, 44, 48
sWOI = 52
XS, WS = 56, 64
sPS = 56
sW2K, sW4K, sHQ, sJ, sKO, sVO, sWO, sXO, sTAG, sSC, sT1, sT2, sT3, sTHR = 72, 73, 74, 75, 76, 77, 78, 79, 80, 81, 82, 83, 84, 85
sOST, sF1, sF2, sPL = 86, 87, 88, 89
sCK, sOLD = 90, 96
STAMP = 100
KBASE, CBASE, VBASE, WQBASE, XBASE = 0, 65536, 98304, 40960, 90112
wqslot = lambda s: ((s + 1) % 3) * 16384
xslot = lambda n: ((n + 1) % 6) * 8192
blocks = lambda a, n: [f"L{b}" for b in range(a // 8192, (a + n - 1) // 8192 + 1)]
PART_OFF = 13 << 20
F1_OFF, F2_OFF, FX_OFF, GEN_OFF, WS_USED = 32 << 20, 34 << 20, 36 << 20, 40 << 20, (40 << 20) + 0x10000
VXW, VF1, VFX = 253, 246, 247
sTAGL, sOWN, VFXA = 3, 96, 242
BOUND = 0x8000
OFR = ((164, 168, 188, 204), (172, 176, 192, 208), (180, 184, 196, 200))
OF = 164
STAMP_OFF = 255 << 20

def mfma(d, a_, b_, c):
    ct = "0" if c is None else rng(c[0], c[1], 4)
    return Op(f"v_mfma_f32_16x16x32_bf16 {rng(d[0], d[1], 4)}, {rng(a_[0], a_[1], 4)}, {rng(b_[0], b_[1], 4)}, {ct}", "mfma",
              rd=R(*a_, 4) + R(*b_, 4), wr=R(*d, 4), c=[] if c is None else R(*c, 4))
def V(text, wr, rd, kind="valu", **k): return Op(text, kind, rd=rd, wr=wr, **k)
def SA(text, wr, rd=(), **k): return Op(text, "salu", rd=rd, wr=list(wr) + ["scc"] if k.pop("scc", False) else wr, **k)
def srd(r): return R("s", r, 4)

class Gen:
    def __init__(s, **cfg):
        s.c = dict(sp=4, xlat=40, x345=20, kvstart=244, kvburst=4, kvgap=34, wostart=30, wogap=30, kvkeep=5, slot_att=(2, 6, 33, 37, 41, 45, 49), thr=2.0 ** 30, slow=True,
                   xpace=12, xlead=0, bpos=36, mid=100, stamps=False, local=False, dump=None, kvnt=True, attpace=1.5, npf=12,
                   wont=False, wqnt=False, lb=2, l2=0, nhead1=4, pf=True, rotfix=False, worot=False, rotp=1, a1=0, npoll=1, lp=1152, ptag='asap', ss=True, q78=(292, 332), skew=True, pk=True, pret=0, cv0=(36, 38, 39, 40), cv1=(43, 44, 46, 47), fxf=' sc1', fs=4224, gxit=11, retouch=True, pw=True, pin=True, split=True, ost='', loc=True, touch=[], asap=1, r1T=8, lf=['', '', ''], ord2=3, oburst=2, opp=True, gP=344, last0=True, gA=36, gB=54, gC=66, wt=1)
        s.c.update(init=["wq0", "x0", "x1", "x2", "x3", "x4", "x5", "wq1"], kvstart=246, kvgap=30, wostart=-40, wogap=40)
        s.c.update(cfg)
        if s.c.get("wt"): s.c.update(ost=" sc1", lf=[" sc1"] * 3)
    def prologue(s):
        o = []; a = o.append
        def sa(t, wr, rd=()): a(Op(t, "salu", rd=rd, wr=wr))
        def va(t, wr, rd=(), **k): a(Op(t, "valu", rd=rd, wr=wr, **k))
        sa("s_cmp_ge_u32 s2, 256", ["scc"]); a(Op("s_cbranch_scc1 L_end", "branch"))
        sa("s_load_dwordx16 s[4:19], s[0:1], 0", [])
        if s.c["stamps"]: sa(f"{s.c.get('clk', 's_memrealtime')} s[{STAMP}:{STAMP+1}]", [])
        if s.c["pf"]:
            sa("s_getpc_b64 s[24:25]", []); a(Op("L_pc:", "label"))
            sa("s_lshr_b32 s26, s2, 3", []); sa("s_lshl_b32 s26, s26, 11", [])
            va("v_lshl_add_u32 v2, v0, 6, s26", ["v2"]); va("v_min_u32 v2, L_codeend-L_pc-4, v2", ["v2"]); va("v_mov_b32 v3, s25", ["v3"])
            va("v_add_co_u32 v2, vcc, s24, v2", ["v2", "vcc"]); sa("s_nop 1", []); va("v_addc_co_u32 v3, vcc, 0, v3, vcc", ["v3", "vcc"])
            va("v_cmp_gt_u32 vcc, 32, v0", ["vcc"]); sa("s_nop 1", []); sa("s_and_saveexec_b64 s[26:27], vcc", []); a(Op("s_cbranch_execz L_nopf", "branch"))
            sa("global_load_dword v255, v[2:3], off", []); a(Op("L_nopf:", "label")); sa("s_mov_b64 exec, -1", [])
            sa("s_lshr_b32 s26, s2, 3", []); sa("s_lshl_b32 s26, s26, 11", [])
            va("v_lshrrev_b32 v2, 6, v0", ["v2"]); va("v_and_b32 v3, 3, v0", ["v3"]); va("v_lshl_add_u32 v2, v2, 2, v3", ["v2"])
            va("v_lshl_add_u32 v2, v2, 7, s26", ["v2"]); va("v_min_u32 v2, L_codeend-L_pc-4, v2", ["v2"]); va("v_mov_b32 v241, s25", ["v241"])
            va("v_add_co_u32 v240, vcc, s24, v2", ["v240", "vcc"]); sa("s_nop 1", []); va("v_addc_co_u32 v241, vcc, 0, v241, vcc", ["v241", "vcc"])
        va("v_lshrrev_b32 v1, 6, v0", ["v1"]); va("v_and_b32 v0, 63, v0", ["v0"])
        lb = s.c["lb"]
        sa(f"s_and_b32 s{sT1}, s2, 7", []); sa(f"s_lshr_b32 s{sT2}, s2, 3", [])
        va(f"v_readfirstlane_b32 s{sW}, v1", [f"s{sW}"], ["v1"], sub="rfl")
        sa(f"s_lshr_b32 s{sB}, s{sT1}, {lb}", []); sa(f"s_lshl_b32 s{sB}, s{sB}, {lb}", []); sa(f"s_and_b32 s{sT3}, s{sT2}, {(1<<lb)-1}", []); sa(f"s_add_u32 s{sB}, s{sB}, s{sT3}", [])
        sa(f"s_and_b32 s{sH}, s{sT1}, {(1<<lb)-1}", []); sa(f"s_lshl_b32 s{sH}, s{sH}, {5-lb}", []); sa(f"s_lshr_b32 s{sT2}, s{sT2}, {lb}", []); sa(f"s_add_u32 s{sH}, s{sH}, s{sT2}", [])
        sa(f"s_lshl_b32 s{sROT}, s{sT3}, {3-lb}", []); sa(f"s_lshr_b32 s{sT1}, s{sT1}, {lb}", []); sa(f"s_add_u32 s{sROT}, s{sROT}, " + (f"s{sT1}" if s.c["rotp"] is None else str(s.c["rotp"])), []); sa(f"s_add_u32 s{sROT}, s{sROT}, s{sH}", [])
        if s.c["rotfix"]:
            sa(f"s_and_b32 s{sT1}, s{sROT}, 6", []); sa(f"s_cmp_eq_u32 s{sT1}, 2", []); sa(f"s_cselect_b32 s{sT1}, 4, 0", []); sa(f"s_add_u32 s{sROT}, s{sROT}, s{sT1}", [])
        va("v_lshrrev_b32 v2, 4, v0", ["v2"]); va("v_and_b32 v3, 15, v0", ["v3"])
        va("v_lshrrev_b32 v4, 3, v0", ["v4"]); va("v_and_b32 v5, 7, v0", ["v5"])
        va("v_lshl_add_u32 v6, v1, 4, v2", ["v6"]); va("v_lshlrev_b32 v6, 13, v6", ["v6"])
        va("v_lshlrev_b32 v7, 1, v2", ["v7"]); va("v_xor_b32 v7, v7, v3", ["v7"]); va(f"v_lshl_add_u32 v{WQD}, v7, 4, v6", [f"v{WQD}"])
        va(f"v_add_u32 v{WQD+1}, {4*8192-1024}, v{WQD}", [f"v{WQD+1}"])
        va(f"v_xor_b32 v{WQD+2}, 128, v{WQD}", [f"v{WQD+2}"]); va(f"v_add_u32 v{WQD+2}, {2*(4*8192-1024)}, v{WQD+2}", [f"v{WQD+2}"])
        va(f"v_add_u32 v{WQD+3}, {4*8192-1024}, v{WQD+2}", [f"v{WQD+3}"])
        va("v_mul_u32_u24 v6, 48, v1", ["v6"]); va("v_add_u32 v6, v6, v4", ["v6"]); va("v_lshlrev_b32 v6, 10, v6", ["v6"])
        va("v_xor_b32 v7, v5, v2", ["v7"]); va(f"v_lshl_add_u32 v{XD}, v7, 4, v6", [f"v{XD}"])
        va(f"v_xor_b32 v{XD+1}, 64, v{XD}", [f"v{XD+1}"]); va(f"v_add_u32 v{XD+1}, {8192-1024}, v{XD+1}", [f"v{XD+1}"])
        sa(f"s_lshl_b32 s{sW2K}, s{sW}, 11", [], [f"s{sW}"]); sa(f"s_lshl_b32 s{sW4K}, s{sW}, 12", [])
        for k in range(3):
            sa(f"s_add_u32 s{sT1}, s{sROT}, {k}", []); sa(f"s_and_b32 s{sT1}, s{sT1}, 7", [])
            sa(f"s_lshl_b32 s{XS+k}, s{sT1}, 7", []); sa(f"s_lshl_b32 s{WS+k}, s{sT1}, 19", [])
        sa(f"s_lshl_b32 s{sT1}, s{sH}, 8", []); sa(f"s_mul_i32 s{sT2}, s{sB}, 196608", [])
        sa(f"s_lshl_b32 s{sT3}, s{sB}, 5", []); sa(f"s_add_u32 s{sT3}, s{sT3}, s{sH}", []); sa(f"s_lshl_b32 s{sT3}, s{sT3}, 17", [])
        for r in (RX, RWQ, RK, RV, RWO, RWS, ROUT): sa(f"s_mov_b32 s{r+3}, 0x20000", [])
        sa(f"s_mov_b32 s{RX+2}, 196608", []); sa(f"s_sub_u32 s{RWQ+2}, 0x400000, s{sT1}", [])
        sa(f"s_mov_b32 s{RK+2}, 0x20000", []); sa(f"s_mov_b32 s{RV+2}, 0x20000", [])
        a(Op("s_waitcnt lgkmcnt(0)", "wait"))
        def base(r, p, off):
            sa(f"s_add_u32 s{r}, s{p}, {off}", [f"s{r}"]); sa(f"s_addc_u32 s{r+1}, s{p+1}, 0", [f"s{r+1}"]); sa(f"s_and_b32 s{r+1}, s{r+1}, 0xffff", [f"s{r+1}"])
        base(RWQ, 10, f"s{sT1}"); base(RX, 4, f"s{sT2}"); base(RK, 6, f"s{sT3}"); base(RV, 8, f"s{sT3}")
        va("v_lshl_add_u32 v6, v1, 3, v2", ["v6"])
        va("v_and_b32 v7, 15, v6", ["v7"]); va("v_xor_b32 v7, v7, v3", ["v7"]); va("v_lshlrev_b32 v6, 8, v6", ["v6"])
        va(f"v_lshl_add_u32 v{KD}, v7, 4, v6", [f"v{KD}"]); va(f"v_xor_b32 v{KD+1}, 64, v{KD}", [f"v{KD+1}"])
        va("v_lshlrev_b32 v7, 1, v2", ["v7"]); va("v_xor_b32 v7, v7, v3", ["v7"])
        va(f"v_lshl_add_u32 v{VD}, v7, 4, v6", [f"v{VD}"]); va(f"v_xor_b32 v{VD+1}, 128, v{VD}", [f"v{VD+1}"])
        return o
    def touch(s, what):
        o = []; sa = lambda t: o.append(Op(t, "salu")); va = lambda t: o.append(Op(t, "valu"))
        sa(f"s_lshr_b32 s{sT1}, s2, 3"); sa(f"s_lshl_b32 s{sT1}, s{sT1}, 2"); sa(f"s_add_u32 s{sT1}, s{sT1}, s{sW}")
        if what == "tx":
            sa(f"s_mul_i32 s{sT1}, s{sT1}, 6"); sa(f"s_and_b32 s{sT2}, s{sB}, 4"); sa(f"s_mul_i32 s{sT2}, s{sT2}, 192"); sa(f"s_add_u32 s{sT1}, s{sT1}, s{sT2}")
            va("v_min_u32 v254, 5, v0"); va(f"v_add_u32 v254, s{sT1}, v254"); va("v_lshlrev_b32 v254, 10, v254")
            o.append(Op("global_load_dword v254, v254, s[4:5] offset:384", "load"))
        else:
            sa(f"s_lshl_b32 s{sT1}, s{sT1}, 3"); sa(f"s_lshr_b32 s{sT2}, s{sT1}, 9"); sa(f"s_lshl_b32 s{sT2}, s{sT2}, 10"); sa(f"s_and_b32 s{sT3}, s{sH}, 24"); sa(f"s_lshl_b32 s{sT3}, s{sT3}, 8")
            sa(f"s_add_u32 s{sT2}, s{sT2}, s{sT3}"); sa(f"s_and_b32 s{sT1}, s{sT1}, 511")
            va("v_and_b32 v253, 7, v0"); va(f"v_add_u32 v253, s{sT1}, v253"); va(f"v_lshl_add_u32 v253, v253, 13, s{sT2}")
            o.append(Op("global_load_dword v253, v253, s[10:11] offset:384", "load"))
        return o
    def prologue2(s):
        o = []; a = o.append
        def sa(t, wr=(), rd=()): a(Op(t, "salu", rd=rd, wr=wr))
        def va(t, wr, rd=(), **k): a(Op(t, "valu", rd=rd, wr=wr, **k))
        def base(r, p, off):
            sa(f"s_add_u32 s{r}, s{p}, {off}"); sa(f"s_addc_u32 s{r+1}, s{p+1}, 0"); sa(f"s_and_b32 s{r+1}, s{r+1}, 0xffff")
        sa(f"s_lshl_b32 s{sT1}, s{sB}, 12"); sa(f"s_add_u32 s{sT1}, s{sT1}, {GEN_OFF}"); sa(f"s_load_dword s{sTAG}, s[18:19], s{sT1}")
        for k in range(3, 8):
            sa(f"s_add_u32 s{sT1}, s{sROT}, {k}"); sa(f"s_and_b32 s{sT1}, s{sT1}, 7")
            sa(f"s_lshl_b32 s{XS+k}, s{sT1}, 7"); sa(f"s_lshl_b32 s{WS+k}, s{sT1}, 19")
        sa(f"s_lshr_b32 s{sHQ}, s{sH}, 2"); sa(f"s_and_b32 s{sJ}, s{sH}, 3")
        sa(f"s_lshl_b32 s{sT1}, s{sHQ}, 19"); sa(f"s_lshl_b32 s{sT2}, s{sJ}, 8"); sa(f"s_add_u32 s{sT1}, s{sT1}, s{sT2}")
        base(RWO, 12, f"s{sT1}"); sa(f"s_sub_u32 s{RWO+2}, 0x400000, s{sT1}")
        sa(f"s_mul_i32 s{sT3}, s{sB}, {192*1024}"); sa(f"s_add_u32 s{sT3}, s{sT3}, s{sT2}"); sa(f"s_lshl_b32 s{sT1}, s{sHQ}, 5"); sa(f"s_add_u32 s{sT3}, s{sT3}, s{sT1}")
        base(ROUT, 14, f"s{sT3}"); sa(f"s_sub_u32 s{ROUT+2}, {8*192*1024}, s{sT3}")
        base(RWS, 18, 0); sa(f"s_mov_b32 s{RWS+2}, {WS_USED}")
        sa(f"s_lshl_b32 s1, s{sB}, 2"); sa(f"s_add_u32 s1, s1, s{sW}"); sa("s_lshl_b32 s1, s1, 5")
        for i in range(4):
            sa(f"s_xor_b32 s{sT1}, s{sH}, {i}"); sa(f"s_add_u32 s{sT2}, s1, s{sT1}"); sa(f"s_mul_i32 s{sOLD+i if i else sOST}, s{sT2}, 12288")
            sa(f"s_and_b32 s{sT1}, s{sT1}, 3"); sa(f"s_lshl_b32 s{sWOI+i}, s{sT1}, 17")
        sa(f"s_lshl_b32 s{sF1}, s{sB}, 3"); sa(f"s_add_u32 s{sF1}, s{sF1}, s{sHQ}"); sa(f"s_lshl_b32 s{sF1}, s{sF1}, 2")
        sa(f"s_add_u32 s{sPL}, s{sF1}, s{sJ}"); sa(f"s_lshl_b32 s{sPL}, s{sPL}, 2"); sa(f"s_add_u32 s{sPL}, s{sPL}, s{sW}"); sa(f"s_mul_i32 s{sPL}, s{sPL}, 10752"); sa(f"s_add_u32 s{sPL}, s{sPL}, {PART_OFF}")
        sa(f"s_add_u32 s{sF1}, s{sF1}, s{sW}"); sa(f"s_mul_i32 s{sF1}, s{sF1}, {s.c['fs']}"); sa(f"s_add_u32 s{sF1}, s{sF1}, {F1_OFF}")
        sa(f"s_lshl_b32 s{sF2}, s{sB}, 7"); sa(f"s_add_u32 s{sF2}, s{sF2}, s{sW}"); sa(f"s_mul_i32 s{sF2}, s{sF2}, {s.c['lp']}"); sa(f"s_add_u32 s{sF2}, s{sF2}, {F2_OFF}")
        sa(f"s_mul_i32 s{sOWN}, s{sH}, {4 * s.c['lp']}"); sa(f"s_add_u32 s{sOWN}, s{sOWN}, s{sF2}")
        sa(f"s_mov_b32 s{sTHR}, {hex(fbits(s.c['thr']))}")
        sa(f"s_mov_b32 s{sSC}, {hex(fbits(1.4426950408889634 * 128 ** -0.5))}")
        va("v_bfe_u32 v6, v0, 2, 2", ["v6"]); va("v_and_b32 v7, 3, v0", ["v7"]); va("v_lshlrev_b32 v7, 3, v7", ["v7"])
        va(f"v_lshlrev_b32 v{VL16}, 4, v0", [f"v{VL16}"])
        t = 249; u = 250
        va(f"v_and_b32 v{t}, 1, v2", [f"v{t}"]); va(f"v_lshl_add_u32 v{t}, v{t}, 2, v6", [f"v{t}"])
        va(f"v_lshl_add_u32 v{t}, v{t}, 5, v7", [f"v{t}"])
        va(f"v_lshl_add_u32 v{u}, v2, 3, v6", [f"v{u}"]); va(f"v_lshl_add_u32 v{WQA}, v{u}, 8, v{t}", [f"v{WQA}"])
        va(f"v_add_u32 v{WQA}, {WQBASE}, v{WQA}", [f"v{WQA}"])
        va(f"v_lshl_add_u32 v{u}, v2, 2, v6", [f"v{u}"]); va(f"v_lshl_add_u32 v{VA}, v{u}, 8, v{t}", [f"v{VA}"])
        va(f"v_add_u32 v{VA}, {VBASE}, v{VA}", [f"v{VA}"])
        if s.c["worot"]:
            sa(f"s_and_b32 s{sT1}, s{sB}, 3"); sa(f"s_lshl_b32 s{sT1}, s{sT1}, 6"); va(f"v_xor_b32 v{VA}, s{sT1}, v{VA}", [f"v{VA}"])
        for T in range(1, 8):
            va(f"v_xor_b32 v{WQA+T}, {T*32}, v{WQA}", [f"v{WQA+T}"]); va(f"v_xor_b32 v{VA+T}, {T*32}, v{VA}", [f"v{VA+T}"])
        va(f"v_lshl_add_u32 v{t}, v1, 3, v2", [f"v{t}"]); va(f"v_lshlrev_b32 v{t}, 10, v{t}", [f"v{t}"])
        va(f"v_lshlrev_b32 v{u}, 1, v2", [f"v{u}"]); va(f"v_xor_b32 v{u}, v{u}, v3", [f"v{u}"]); va(f"v_lshl_add_u32 v{WOD}, v{u}, 4, v{t}", [f"v{WOD}"])
        va(f"v_xor_b32 v{WOD+1}, 128, v{WOD}", [f"v{WOD+1}"]); va(f"v_add_u32 v{WOD+1}, {4096-1024}, v{WOD+1}", [f"v{WOD+1}"])
        va(f"v_lshrrev_b32 v{t}, 1, v3", [f"v{t}"]); va(f"v_xor_b32 v{t}, v{t}, v2", [f"v{t}"]); va(f"v_lshlrev_b32 v{t}, 4, v{t}", [f"v{t}"])
        va(f"v_lshl_add_u32 v{t}, v3, 7, v{t}", [f"v{t}"]); va(f"v_lshl_add_u32 v{XA}, v1, 11, v{t}", [f"v{XA}"])
        va(f"v_add_u32 v{XA}, {XBASE}, v{XA}", [f"v{XA}"]); va(f"v_xor_b32 v{XA+1}, 64, v{XA}", [f"v{XA+1}"])
        va(f"v_and_b32 v{t}, 1, v2", [f"v{t}"]); va(f"v_lshrrev_b32 v{u}, 1, v2", [f"v{u}"]); va(f"v_lshl_add_u32 v{t}, v{t}, 1, v{u}", [f"v{t}"])
        va(f"v_xor_b32 v{t}, v{t}, v3", [f"v{t}"]); va(f"v_lshlrev_b32 v{t}, 4, v{t}", [f"v{t}"]); va(f"v_lshl_add_u32 v{KA}, v3, 8, v{t}", [f"v{KA}"])
        for d in range(1, 4): va(f"v_xor_b32 v{KA+d}, {d*64}, v{KA}", [f"v{KA+d}"])
        for i in range(4): va(f"v_mov_b32 v{ONES+i}, 0x3f803f80", [f"v{ONES+i}"])
        va("v_mul_u32_u24 v251, 48, v1", ["v251"]); va("v_add_u32 v251, v251, v3", ["v251"]); va("v_lshlrev_b32 v251, 10, v251", ["v251"]); va("v_lshl_add_u32 v251, v2, 3, v251", ["v251"])
        a(Op("s_waitcnt lgkmcnt(0)", "wait"))
        sa(f"s_add_u32 s{sTAG}, s{sTAG}, 1")
        sa(f"s_getreg_b32 s{sT1}, hwreg(HW_REG_XCC_ID, 0, 4)"); sa(f"s_add_u32 s{sT1}, s{sT1}, 1"); sa(f"s_lshl_b32 s{sT1}, s{sT1}, 24"); sa(f"s_add_u32 s0, s{sT1}, s{sTAG}")
        for i in range(4): va(f"v_mov_b32 v{ACC+i}, s0", [f"v{ACC+i}"])
        va(f"v_lshrrev_b32 v{VF1}, 1, v7", [f"v{VF1}"]); sa(f"s_lshl_b32 s{sT2}, s{sHQ}, 4"); va(f"v_add_u32 v{u}, s{sT2}, v{VF1}", [f"v{u}"]); va(f"v_add_u32 v{VF1}, s{sF1}, v{VF1}", [f"v{VF1}"])
        va(f"v_mul_u32_u24 v{VFXA}, {s.c['lp']}, v{u}", [f"v{VFXA}"])
        sa(f"s_lshl_b32 s{sT1}, s{sJ}, 2"); sa(f"s_add_u32 s1, s{sT1}, s{sF1}"); sa(f"s_add_u32 s{sT1}, s{sOWN}, {FX_OFF - F2_OFF}")
        sa("s_mov_b64 exec, 0xff"); a(Op(f"buffer_store_dwordx4 {rng('v', ACC, 4)}, v{VL16}, s[{RWS}:{RWS+3}], s{sT1} offen sc1", "store", rd=R("v", ACC, 4))); sa("s_mov_b64 exec, -1")
        return o
    def dma(s, S, m0base, ldsaddr, soff_ops, sreg, rsrc, voffs, nt, lds, after=(), earliest=None):
        ops = []
        E = earliest if isinstance(earliest, (list, tuple)) else [earliest] * len(voffs)
        e0 = E[0]
        m = Op(f"s_add_u32 m0, s{m0base}, {ldsaddr}", "salu", wr=["m0"], earliest=None if e0 is None else e0 - 5, latest=None if e0 is None else e0 - 1)
        if e0 is None: S.append(m)
        for t_, wr in soff_ops: S.append(Op(t_, "salu", wr=wr, earliest=None if e0 is None else e0 - 6, latest=None if e0 is None else e0 - 2))
        if e0 is not None: S.append(m)
        for i, v in enumerate(voffs):
            off = f" offset:{1024*i}" if i else ""
            d = Op(f"buffer_load_dwordx4 v{v}, s[{rsrc}:{rsrc+3}], s{sreg} offen{off}{' nt' if nt else ''} lds", "dma",
                   rd=["m0", f"s{sreg}", f"v{v}"], lds_wr=lds, after=after, earliest=E[i], latest=E[i] if isinstance(earliest, (list, tuple)) else None, chain="vm")
            S.append(d); ops.append(d)
        return ops
    def dK(s, S, j, **k): return s.dma(S, sW2K, s.blk[f'k{j}'] * 8192, [(f"s_mov_b32 s{sKO}, {j*8192}", [f"s{sKO}"])], sKO, RK, [KD, KD+1], s.c["kvnt"], [], **k)
    def dV(s, S, j, **k): return s.dma(S, sW2K, s.blk[f'v{j}'] * 8192, [(f"s_mov_b32 s{sVO}, {j*8192}", [f"s{sVO}"])], sVO, RV, [VD, VD+1], s.c["kvnt"], [], **k)
    def dWQ(s, S, st, **k): return s.dma(S, sW4K, WQBASE + wqslot(st), [], WS + st, RWQ, [WQD + i for i in range(4)], s.c["wqnt"], [], **k)
    def dX(s, S, n, **k):
        st, t = divmod(n, 3)
        return s.dma(S, sW2K, XBASE + xslot(n), [(f"s_add_u32 s{sXO}, s{XS+st}, {t*16384}", [f"s{sXO}"])], sXO, RX, [XD, XD+1], False, [f"X{(n+1)%6}"], **k)
    def dWO(s, S, kk, **k):
        return s.dma(S, sW2K, s.blk[f"o{kk}"] * 8192, [(f"s_add_u32 s{sWO}, s{sWOI + kk//4}, " + (f"s{WS + kk%4}" if s.c["worot"] else f"{(kk%4)*32768}"), [f"s{sWO}"])], sWO, RWO, [WOD, WOD+1], s.c["wont"], [], **k)
    def oepi(s, t, S, check=True):
        st_flag = s.c["ost"]
        l = f"v{LS+4*t}"; rc = f"v{LS+4*t+1}"
        S.append(V(f"v_rcp_f32 {rc}, {l}", [rc], [l], kind="trans"))
        if check: S.append(V(f"v_cmp_nge_f32 s[{sCK+2*t}:{sCK+2*t+1}], s{sTHR}, {l}", [f"s{sCK+2*t}", f"s{sCK+2*t+1}"], [l], tag="eager"))
        for sp in range(4):
            dst = OFR[t][sp]
            for hlf in range(2):
                A = acc(t, 2 * sp + hlf)
                if s.c["pk"] and t >= s.c.get("pkt", 2):
                    for i in (0, 2): S.append(V(f"v_pk_mul_f32 v[{A+i}:{A+i+1}], v[{A+i}:{A+i+1}], v[{LS+4*t}:{LS+4*t+1}] op_sel:[0,1] op_sel_hi:[1,1]", R("v", A+i, 2), R("v", A+i, 2) + [rc], tag="eager", earliest=99999))
                else:
                    for i in range(4): S.append(V(f"v_mul_f32 v{A+i}, {rc}, v{A+i}", [f"v{A+i}"], [f"v{A+i}", rc], tag="eager"))
                for p in range(2):
                    S.append(V(f"v_cvt_pk_bf16_f32 v{dst+2*hlf+p}, v{A+2*p}, v{A+2*p+1}", [f"v{dst+2*hlf+p}"], [f"v{A+2*p}", f"v{A+2*p+1}"], tag="eager"))
            if sp == 0: S.append(Op(f"s_add_u32 s{sXO}, s{sOST}, {t*4096}", "salu", wr=[f"s{sXO}"]))
            off = f" offset:{sp*1024}" if sp else ""
            o = Op(f"buffer_store_dwordx4 {rng('v', dst, 4)}, v{VL16}, s[{RWS}:{RWS+3}], s{sXO} offen{off}{st_flag}", "store",
                   rd=R("v", dst, 4) + [f"v{VL16}", f"s{sXO}"], chain="vm", tag="asap" if s.c.get("asap") else "")
            S.append(o)
            if check: s.ostores.append(o)
    def stream1(s):
        c = s.c; S = []; nm = [0]; ev = []; seq = [0]
        def at(g, fn): heapq.heappush(ev, (g, seq[0], fn)); seq[0] += 1
        def M(op):
            S.append(op); nm[0] += 1
            if nm[0] - 1 in bargaps: return
            while ev and ev[0][0] <= nm[0] - 1: heapq.heappop(ev)[2]()
        XF = lambda n, ks: 64 + n * 8 + ks * 4
        WF = lambda T, ks, st=0: (64 if st == 7 and c["ss"] else 0) + T * 8 + ks * 4
        D = {}
        RD = {}
        BAR = {}
        def bar(name, g, vm=(), lg=()):
            b = Op("s_barrier", "bar", earliest=g, latest=g, chain="bar"); b.need_vm = [o for n in vm for o in D[n]]; b.need_lgkm = [o for n in lg for o in RD[n]]
            S.append(b); BAR[name] = b; return b
        def xread(n, e=None):
            RD[f"x{n}"] = [Op(f"ds_read_b128 {rng('a', XF(n, ks), 4)}, v{XA+ks} offset:{xslot(n)}", "ds", rd=[f"v{XA+ks}"], wr=R("a", XF(n, ks), 4),
                              lds_rd=[f"X{(n+1)%6}"], earliest=e) for ks in range(2)]
            S.extend(RD[f"x{n}"])
        def wqread(st, T):
            for ks in range(2):
                for r in range(2):
                    o = Op(f"ds_read_b64_tr_b16 {rng('a', WF(T, ks, st) + 2*r, 2)}, v{WQA+T} offset:{wqslot(st) + ks*8192 + r*1024}", "ds",
                           rd=[f"v{WQA+T}"], wr=R("a", WF(T, ks, st) + 2*r, 2), after=[BAR[f"q{st}"]])
                    S.append(o); RD.setdefault(f"wq{st}", []).append(o)
        KF = lambda j, kt, ds: ((128 if c["ss"] else 64) if j == 0 else 0) + (kt * 4 + ds) * 4
        def pin(ops, g0, step=1):
            if g0 is None or not c["pin"]: return
            for i, o in enumerate(ops): o.earliest = o.latest = g0 + i * step
        def kread(j, b, e=None, p=None):
            RD[f"k{j}"] = [Op(f"ds_read_b128 {rng('a', KF(j, kt, ds), 4)}, v{KA+ds} offset:{s.blk[f'k{j}']*8192 + kt*4096}", "ds", rd=[f"v{KA+ds}"],
                              wr=R("a", KF(j, kt, ds), 4), after=[b], earliest=e) for kt in range(2) for ds in range(4)]
            pin(RD[f"k{j}"], p); S.extend(RD[f"k{j}"])
        VF = lambda j: 64 if j == 15 and c["skew"] else 32
        def vread(j, b, p=None):
            RD[f"v{j}"] = [Op(f"ds_read_b64_tr_b16 {rng('a', VF(j) + T*4 + 2*r, 2)}, v{VA+T} offset:{s.blk[f'v{j}']*8192 - VBASE + r*4096}", "ds", rd=[f"v{VA+T}"],
                              wr=R("a", VF(j) + T*4 + 2*r, 2), after=[b]) for T in range(8) for r in range(2)]
            pin(RD[f"v{j}"], p); S.extend(RD[f"v{j}"])
        bp = c["bpos"]
        SS_ = c["ss"]
        bq = lambda st: -1 if st == 0 else (c["q78"][st - 7] if SS_ and st >= 7 else (st - 1) * 48 + bp)
        A0 = 384
        it0 = lambda j: A0 + 24 + 51 * j
        battn = lambda j: it0(j) + (7 if j == 14 and c["skew"] else 33)
        NG = it0(15) + 27
        gb = lambda nme: bq(int(nme[1:])) if nme[0] == "q" else battn(int(nme[1:]))
        bars = [f"q{i}" for i in range(1, 9 if SS_ else 8)] + [f"a{j}" for j in range(15)]
        init = c.get("init", ["wq0", "x0", "x1", "x2", "x3", "x4", "x5", "wq1", "k0", "k1", "v0", "wq2"])
        slots = list(range(1, it0(0) + 30, c["sp"])) + [it0(j) + o for j in range(15) for o in c["slot_att"] if it0(j) + o >= it0(0) + 30] + list(range(it0(15) + 1, NG, c["sp"]))
        slots.sort()
        xdl = lambda n: (280, 312, 350, 296, 314, 352)[n - 18] if SS_ and n >= 18 else 48 * (n // 3) - 8 + 2 * (n % 3)
        xrd = {n: (-1 if n < 3 else min(c["x345"] + 2 * (n - 3), xdl(n))) for n in range(6)}
        free = {b_: (-1, None) for b_ in (0, 1, 2, 3, 4, 17, 18, 19)}
        free.update({5: (bq(6), "q6"), 6: (bq(6), "q6"), 7: (bq(7), "q7"), 8: (bq(7), "q7"), 9: (battn(0), "a0"), 10: (battn(0), "a0")})
        if SS_: free.update({b_: (bq(8), "q8") for b_ in (7, 8, 9, 10)})
        xfree = {}
        def xdead(n):
            nb = next(x for x in bars if gb(x) >= xrd[n] + 10); xfree[n] = nb; free[11 + (n + 1) % 6] = (gb(nb), nb)
        s.blk = {}
        kvorder = ["k0", "k1", "v0"] + [x for j in range(1, 15) for x in (f"k{j+1}", f"v{j}")] + ["v15"]
        def take(nme, g):
            cand = [b_ for b_ in (range(8) if nme[0] == "k" else range(19, 11, -1)) if b_ in free and free[b_][0] <= g]
            if not cand: return None
            b_ = cand[0]; dep = free[b_][1]; j = int(nme[1:]); s.blk[nme] = b_
            fb = max(0, j - 1) if nme[0] == "k" else j
            if fb < (14 if nme[0] == "v" and c["skew"] else 15): free[b_] = (battn(fb), f"a{fb}")
            else: del free[b_]
            return (dep,)
        head = []
        for it in init:
            if it[0] == "t": head.append(s.touch(it)); continue
            if it[0] in "kv": take(it, -1)
            f = {"w": s.dWQ, "x": s.dX, "k": s.dK, "v": s.dV}[it[0]]
            head.append([]); D[it] = f(head[-1], int(it.lstrip("wqxkv")))
        s.headgroups = head
        plan = []
        qwq = [st for st in range(8) if f"wq{st}" not in init]; qx = list(range(6, 24)); qkv = [x for x in kvorder if x not in init]
        qwo = list(range(16))
        forced = [tuple(x) for x in c.get("forced", [])]
        nkv = 0; lastkv = -99; lastwo = -99; i = 0
        while i < len(slots) and (qwq or qx or qkv or qwo):
            g = slots[i]; pick = None
            if forced and g >= forced[0][1]:
                nme = forced.pop(0)[0]; qkv.remove(nme); take(nme, g); pick = (nme, 2, None)
            elif qwq and bq(max(0, qwq[0] - 2)) < g: st = qwq.pop(0); pick = (f"wq{st}", 4, f"q{st-2}" if st > 2 else None)
            elif qx and xrd[qx[0] - 6] + 7 <= g:
                n = qx.pop(0); pick = (f"x{n}", 2, None); xrd[n] = min(xdl(n), slots[i + 1] + c["xlat"])
                if n >= 18: xdead(n)
            need = lambda x: battn(max(0, int(x[1:]) - (2 if x[0] == "k" else 1)))
            if pick is None and qkv and g >= c["kvstart"] and (nkv < c["kvburst"] + (g - c["kvstart"]) / c["kvgap"] or g >= need(qkv[0]) - c.get("kvlead", 170)):
                dep = take(qkv[0], g)
                if dep: pick = (qkv.pop(0), 2, dep[0]); nkv += 1; lastkv = g
            if pick is None and qwo and g >= it0(0) + c["wostart"] and i + 1 < len(slots) and g >= lastwo + c["wogap"]:
                nk = sum(x[0] == "k" for x in qkv); nv_ = sum(x[0] == "v" for x in qkv)
                for b_ in (8, 9, 10, 11, 7, 12, 6, 13, 5, 14, 4, 15, 3, 16, 2, 17, 1, 18, 0, 19):
                    if b_ not in free or free[b_][0] > g: continue
                    if not 8 <= b_ < 12:
                        left = [x for x in free if (x < 8) == (b_ < 8) and not 8 <= x < 12 and x != b_]
                        if len(left) < min(c["kvkeep"], 2 + (nk if b_ < 8 else nv_)) and (nk if b_ < 8 else nv_): continue
                    kk = qwo.pop(0); s.blk[f"o{kk}"] = b_; pick = (f"o{kk}", 2, free[b_][1]); del free[b_]; lastwo = g; break
            if pick is None: i += 1; continue
            plan.append((pick[0], slots[i:i + pick[1]], pick[2])); i += pick[1]
        assert not (qwq or qx or qkv), (qwq, qx, qkv)
        s.wo_left = qwo; s.plan = plan; s.xrd = xrd
        bar("q0", -1, vm=["wq0"])
        for n in range(3): xread(n, -1)
        for T in range(8): wqread(0, T)
        for n in range(3, 24): at(xrd[n], lambda n=n: xread(n, xrd[n]))
        for nme, gs, dep in plan:
            def f(nme=nme, gs=gs, dep=dep):
                kw = dict(after=[BAR[dep]] if dep else [], earliest=list(gs))
                n = int(nme.lstrip("wqxkvot"))
                D[nme] = {"w": s.dWQ, "x": s.dX, "k": s.dK, "v": s.dV, "o": s.dWO}[nme[0]](S, n, **kw)
            at(gs[0], f)
        for g_ in ([330] + [it0(j) + 42 for j in (2, 6, 10, 14)] if c["pf"] and c["retouch"] else []):
            at(g_, lambda g_=g_: S.append(Op("global_load_dword v255, v[240:241], off", "load", chain="vm", earliest=g_, latest=g_)))
        if c["worot"]:
            def rs():
                for n in range(4):
                    S.append(Op(f"s_xor_b32 s{WS+n}, s{sB}, {n}", "salu", wr=[f"s{WS+n}"], earliest=250))
                    S.append(Op(f"s_and_b32 s{WS+n}, s{WS+n}, 3", "salu", rd=[f"s{WS+n}"], wr=[f"s{WS+n}"], earliest=250))
                    S.append(Op(f"s_lshl_b32 s{WS+n}, s{WS+n}, 15", "salu", rd=[f"s{WS+n}"], wr=[f"s{WS+n}"], earliest=250, latest=330))
            at(250, rs)
        gx = it0(c["gxit"]) + 42
        def xcheck():
            S.append(Op(f"s_add_u32 s{sXO}, s{sF2}, {FX_OFF - F2_OFF}", "salu", wr=[f"s{sXO}"], earliest=gx - 3, latest=gx - 1))
            S.append(Op(f"buffer_load_dword v{VFX}, v{VFXA}, s[{RWS}:{RWS+3}], s{sXO} offen{c['fxf']}", "load", rd=[f"s{sXO}"], wr=[f"v{VFX}"], chain="vm", earliest=gx, latest=gx))
        at(gx, xcheck)
        s.D = D
        bargaps = {gb(x) for x in bars}
        def qepi(t):
            for ds in range(4):
                for hlf in range(2):
                    A = acc(t, 2 * ds + hlf)
                    for i in range(4): S.append(V(f"v_mul_f32 v{A+i}, s{sSC}, v{A+i}", [f"v{A+i}"], [f"v{A+i}"], tag="eager"))
                    for p in range(2):
                        q = QF + (t * 4 + ds) * 4 + 2 * hlf + p
                        S.append(V(f"v_cvt_pk_bf16_f32 v{q}, v{A+2*p}, v{A+2*p+1}", [f"v{q}"], [f"v{A+2*p}", f"v{A+2*p+1}"], tag="eager"))
                q = QF + (t * 4 + ds) * 4
                for p in range(2): S.append(V(f"v_permlane16_swap_b32 v{q+p}, v{q+2+p}", [f"v{q+p}", f"v{q+2+p}"], [f"v{q+p}", f"v{q+2+p}"], kind="perm"))
        def qbar():
            st = next((x for x in range(1, 9 if SS_ else 8) if bq(x) == nm[0] - 1), None)
            if st is None: return
            kv0 = ["k0", "k1", "v0"]
            if SS_ and st >= 7: vm, lg = (["wq7"], []) if st == 7 else (kv0, ["wq6", "wq7"])
            else: vm, lg = [f"wq{st}"] + (kv0 if st == 7 else []), [f"wq{st-1}"]
            bar(f"q{st}", bq(st), vm=vm, lg=lg + [f"x{n}" for n in xfree if xfree[n] == f"q{st}"])
            while ev and ev[0][0] <= nm[0] - 1: heapq.heappop(ev)[2]()
            if SS_ and st == 7:
                for T in range(8): wqread(7, T)
            if SS_ and st == 8: kread(0, BAR["q8"])
        def qp(st, T, t):
            for ks in range(2):
                M(mfma(("v", acc(t, T)), ("a", WF(T, ks, st)), ("a", XF(st * 3 + t, ks)), None if st == 0 and ks == 0 else ("v", acc(t, T)))); qbar()
        for st in range(6 if SS_ else 8):
            order = [(T, t) for T in range(8) for t in range(3)] if st < 7 else [(T, t) for t in range(3) for T in range(8)]
            for T, t in order:
                qp(st, T, t)
                if st == 7 and T == 7: qepi(t)
            if st < 7:
                for T in range(8): wqread(st + 1, T)
            if st == 6: kread(0, BAR["q7"], e=7 * 48 + 8)
        if not SS_: kread(1, BAR["q7"]); vread(0, BAR["q7"])
        def qk(j, t):
            for kt in range(2):
                for ds in range(4):
                    cc = ("v", sS(t, kt)) if ds else (None if j == 0 else ("v", NM + 4 * t))
                    M(mfma(("v", sS(t, kt)), ("a", KF(j, kt, ds)), ("v", QF + (t * 4 + ds) * 4), cc))
        def firstmax(t):
            r = [f"v{sS(t, 0) + i}" for i in range(8)]; m, tm = f"v{2*t}", f"v{2*t+1}"
            S.append(V(f"v_max3_f32 {m}, {r[0]}, {r[1]}, {r[2]}", [m], r[0:3]))
            S.append(V(f"v_max3_f32 {m}, {m}, {r[3]}, {r[4]}", [m], [m] + r[3:5]))
            S.append(V(f"v_max3_f32 {m}, {m}, {r[5]}, {r[6]}", [m], [m] + r[5:7]))
            S.append(V(f"v_max_f32 {m}, {m}, {r[7]}", [m], [m, r[7]]))
            for sw in ("16", "32"):
                S.append(V(f"v_mov_b32 {tm}, {m}", [tm], [m]))
                S.append(V(f"v_permlane{sw}_swap_b32 {m}, {tm}", [m, tm], [m, tm], kind="perm"))
                S.append(V(f"v_max_f32 {m}, {m}, {tm}", [m], [m, tm]))
            for i in range(4): S.append(V(f"v_sub_f32 v{NM+4*t+i}, 0, {m}", [f"v{NM+4*t+i}"], [m]))
            for x in r: S.append(V(f"v_sub_f32 {x}, {x}, {m}", [x], [x, m]))
            for o in S[-22:]: o.tag = "eager"
        PR = lambda j, t: NM if (j, t) == (15, 2) and c["skew"] else PP + 4 * t
        def softmax(j, t, pe=None, pc=None):
            E = [V(f"v_exp_f32 v{x}, v{x}", [f"v{x}"], [f"v{x}"], kind="trans") for x in range(sS(t, 0), sS(t, 0) + 8)]
            C = [V(f"v_cvt_pk_bf16_f32 v{PR(j, t)+p}, v{sS(t, 0)+2*p}, v{sS(t, 0)+2*p+1}", [f"v{PR(j, t)+p}"], [f"v{sS(t, 0)+2*p}", f"v{sS(t, 0)+2*p+1}"]) for p in range(4)]
            pin(E, pe)
            if isinstance(pc, tuple) and c["pin"]:
                for o, g_ in zip(C, pc): o.earliest = o.latest = g_
            else: pin(C, pc)
            if pe is None:
                for o in C: o.tag = "eager"
            S.extend(E + C)
        def pv(j, t):
            M(mfma(("v", LS + 4 * t), ("v", ONES), ("v", PR(j, t)), ("v", LS + 4 * t) if j else None))
            for T in range(8): M(mfma(("v", acc(t, T)), ("a", VF(j) + T * 4), ("v", PR(j, t)), ("v", acc(t, T)) if j else None))
        s.ostores = []
        oepi = lambda t: s.oepi(t, S)
        def first(t): qk(0, t); firstmax(t); softmax(0, t)
        if SS_:
            for st in (6, 7):
                for T in range(8): qp(st, T, 0)
            qepi(0)
            for T in range(8): qp(6, T, 1); qp(7, T, 1)
            qepi(1); first(0)
            for T in range(8): qp(6, T, 2); qp(7, T, 2)
            qepi(2); kread(1, BAR["q8"]); vread(0, BAR["q8"]); first(1)
        else:
            for t in range(3): first(t)
        for j in range(14 if c["skew"] else 16):
            for t in range(3):
                if SS_ and j == 0 and t == 1: first(2)
                if t == 2 and j < 15:
                    vm = ([f"k{j+2}"] if j < 14 else []) + [f"v{j+1}"]
                    lg = [f"k{j+1}", f"v{j}"] + (["k0"] + ([] if SS_ else ["wq7"]) if j == 0 else []) + [f"x{n}" for n in xfree if xfree[n] == f"a{j}"]
                    bar(f"a{j}", battn(j), vm=vm, lg=lg)
                    while ev and ev[0][0] <= nm[0] - 1: heapq.heappop(ev)[2]()
                if j < 15: qk(j + 1, t)
                g0 = it0(j)
                if t == 2 and j < 14: kread(j + 2, BAR[f"a{j}"], p=g0 + 34)
                pv(j, t)
                if j < 15:
                    steady = j >= 1
                    if t == 0: softmax(j + 1, t, *((g0 + 8, tuple(g0 + x for x in c["cv0"])) if steady else ()))
                    elif t == 1: softmax(j + 1, t, *((g0 + 25, tuple(g0 + x for x in c["cv1"])) if steady and j < 14 else ((g0 + 25, None) if steady else ())))
                    else: softmax(j + 1, t, *((g0 + 51 + 16, tuple(g0 + 51 + x for x in (24, 24, 34, 35))) if j < (13 if c["skew"] else 14) else ()))
                else: oepi(t)
            if j < 15: vread(j + 1, BAR[f"a{j}"], p=it0(j) + 43 if j < 14 else None)
        if c["skew"]:
            g0 = it0(14)
            qk(15, 0); bar("a14", battn(14), vm=["v15"], lg=["k15"])
            while ev and ev[0][0] <= nm[0] - 1: heapq.heappop(ev)[2]()
            vread(15, BAR["a14"])
            for o, g_ in zip(RD["v15"], (16, 16, 17, 18, 19, 20, 21, 21, 22, 22, 23, 23, 24, 24, 25, 25)): o.earliest = o.latest = g0 + g_
            pv(14, 0); softmax(15, 0, g0 + 8, tuple(g0 + x for x in (17, 18, 19, 20))); qk(15, 1); pv(15, 0); oepi(0); pv(14, 1); softmax(15, 1); qk(15, 2); softmax(15, 2); pv(15, 1); oepi(1); pv(14, 2); pv(15, 2); oepi(2)
        assert not ev, ev
        return S
    def stream2(s):
        c = s.c
        ring = [("a", 16 * i) for i in range(4)] + [("a", 208 + 16 * i) for i in range(3)] + [("v", QF + 16 * i) for i in range(3)]
        rp = [0]; U = {}
        OB = lambda i, t, sp: ("v", OFR[t][sp]) if i == 0 else ("a", 64 + ((i - 1) * 12 + t * 4 + sp) * 4)
        q4 = lambda p, r: [(p, r + 4 * n) for n in range(4)]
        ring = [q4(*x) for x in ring]
        def unit(S, i, T, after=(), slot=None):
            slot_given = slot is not None
            if slot is None: slot = ring[rp[0] % len(ring)]; rp[0] += 1
            U[i, T] = slot
            for sp in range(4):
                ad = s.blk[f"o{4*i+sp}"] * 8192; p, r0 = slot[sp]
                for r in range(2):
                    S.append(Op(f"ds_read_b64_tr_b16 {rng(p, r0 + 2*r, 2)}, v{WA + 8*(ad >> 16) + T} offset:{(ad & 65535) + r*4096}", "ds",
                                rd=[f"v{WA + 8*(ad >> 16) + T}"], wr=R(p, r0 + 2*r, 2), after=after, tag="eager" if slot_given and i else ""))
        def chain(S, i, T, t):
            for sp in range(4): S.append(mfma(("v", acc(t, T)), U[i, T][sp], OB(i, t, sp), None if i == 0 and sp == 0 else ("v", acc(t, T))))
        def oload(i, t, dst, g=None, so=sXO, step=4):
            dst.append(Op(f"s_add_u32 s{so}, s{sOLD+i}, {t*4096}", "salu", wr=[f"s{so}"], earliest=None if g is None else g - 3, latest=None if g is None else g - 1))
            for sp in range(4):
                p, r = OB(i, t, sp); off = f" offset:{sp*1024}" if sp else ""; e = None if g is None else g + step * sp
                dst.append(Op(f"buffer_load_dwordx4 {rng(p, r, 4)}, v{VL16}, s[{RWS}:{RWS+3}], s{so} offen{off}{c['lf'][i-1]}", "load",
                              rd=[f"v{VL16}", f"s{so}"], wr=R(p, r, 4), chain="vm", sub=1, earliest=e, latest=e))
        pre = [Op(f"s_and_b32 s{sT2}, s{sB}, {3 if c['worot'] else 0}", "salu"), Op(f"s_lshl_b32 s{sT2}, s{sT2}, 1", "salu"), Op(f"s_xor_b32 s{sT1}, s{sHQ}, s{sT2}", "salu"),
               Op(f"s_lshl_b32 s{sT1}, s{sT1}, 5", "salu", wr=[f"s{sT1}"]), V(f"v_subrev_u32 v240, {VBASE}, v{VA}", ["v240"], [f"v{VA}"]),
               V(f"v_xor_b32 v240, s{sT1}, v240", ["v240"], ["v240"])]
        for wdw in range(3):
            for T in range(8):
                r = WA + 8 * wdw + T
                pre.append(V(f"v_xor_b32 v{r}, {T*32}, v240", [f"v{r}"], ["v240"]) if wdw == 0 else V(f"v_add_u32 v{r}, 65536, v{r-8}", [f"v{r}"], [f"v{r-8}"]))
        s.pre2 = pre
        R0 = []
        O3 = c["ord2"] == 3
        H1 = ring[4:10] + [[("v", LS), ("v", LS + 4), ("v", LS + 8), ("v", ONES)], ring[3]]
        H23 = ring[0:3] + [[("v", OF + 16 * n + 4 * m) for m in range(4)] for n in range(3)]
        for T in range(8):
            unit(R0, 0, T, slot=ring[T % 3] if O3 else None)
            for t in range(3): chain(R0, 0, T, t)
        nT = c["r1T"]
        for T in range(nT): unit(R0, 1, T, slot=H1[T] if O3 else None)
        for T in range(1, 8):
            R0 += [Op(f"s_xor_b32 s{sT1}, s{sHQ}, {T}", "salu", wr=[f"s{sT1}"]), Op(f"s_sub_i32 s{sT1}, s{sT1}, s{sHQ}", "salu", rd=[f"s{sT1}"], wr=[f"s{sT1}"]),
                   Op(f"s_mul_i32 s{sT1}, s{sT1}, {16*10752}", "salu", rd=[f"s{sT1}"], wr=[f"s{sT1}"]),
                   Op(f"s_add_u32 s{sT1}, s{sT1}, s{sPL}", "salu", rd=[f"s{sT1}"], wr=[f"s{sT1}"]),
                   Op(f"s_add_u32 s{sPS+T-1}, s{sT1}, {(T-1)*1536}", "salu", rd=[f"s{sT1}"], wr=[f"s{sPS+T-1}"])]
        R0.append(V(f"v_lshrrev_b32 v241, 1, v{VL16}", ["v241"], []))
        S = R0; s.retry = []
        gA, gB, gC = c["gA"], c["gB"], c["gC"]
        wt = "sc1" in c["ost"]
        assert not wt or all("sc1" in x for x in c["lf"])
        S.append(V(f"v_cmp_ne_u32 vcc, s0, v{VFX}", ["vcc"], [f"v{VFX}"], earliest=gA - 6, latest=gA - 6))
        for n_, (r_, m_) in enumerate(((sTAGL, 0xff),)):
            S.append(Op(f"s_and_b32 s{sT2}, vcc_lo, {m_}\n    s_cselect_b32 s{r_}, s0, s{sTAG}" if c["loc"] else f"s_mov_b32 s{r_}, s0", "cbr", rd=["vcc"], wr=[f"s{r_}"],
                        earliest=gA - 3 + n_, latest=gA - 3 + n_))
        fl = Op(f"s_cmp_lg_u32 s{sTAGL}, s{sTAG}\n    s_cbranch_scc1 L_far\n    s_mov_b64 exec, 1\n    buffer_store_dword v6, v7, s[{RWS}:{RWS+3}], s1 offen\n    s_mov_b64 exec, -1\nL_farback:",
                "store", rd=[f"s{sTAGL}"], chain="vm", earliest=gA, latest=gA); fl.need_vm = list(s.ostores); S.append(fl)
        s.retry += [Op(x, "label" if x.endswith(":") else "salu") for x in
                    ("L_far:",) + (() if wt else ("buffer_wbl2 sc1", "s_waitcnt vmcnt(0)")) + ("s_mov_b64 exec, 1", f"buffer_store_dword v6, v7, s[{RWS}:{RWS+3}], s1 offen sc1", "s_mov_b64 exec, -1", "s_branch L_farback")]
        pl = f"buffer_load_dword v5, v{VF1}, s[{RWS}:{RWS+3}], 0 offen sc1"
        if c["a1"]:
            S += [V(f"v_cmp_lt_u32 vcc, 63, v{VL16}", ["vcc"], [], earliest=2), V(f"v_cndmask_b32 v3, v{VF1}, v4, vcc", ["v3"], ["vcc"], earliest=2), V("v_mov_b32 v5, 0", ["v5"], [], earliest=2)]
            al = f"buffer_atomic_or v5, v3, s[{RWS}:{RWS+3}], 0 offen sc0"
            S.append(Op(al, "load", rd=["v3", "v5"], wr=["v5"], chain="vm", sub=1, earliest=gB, latest=gB))
            S.append(V(f"v_cmp_ne_u32 vcc, s{sTAGL}, v5", ["vcc"], ["v5"], earliest=gC - 4, latest=gC - 4))
            go = Op("s_and_b32 vcc_lo, vcc_lo, 15\n    s_cbranch_scc1 L_await1\nL_go1:", "cbr", rd=["vcc"], earliest=gC, latest=gC); S.append(go)
            s.retry += [Op(x, "label" if x.endswith(":") else "salu") for x in
                        ("L_await1:", f"s_cmp_lg_u32 s{sTAGL}, s{sTAG}", "s_cbranch_scc1 L_wait1", f"s_mov_b32 s{sT3}, 0", "L_apoll1:", "v_mov_b32 v5, 0", al, "s_waitcnt vmcnt(0)",
                         f"v_cmp_ne_u32 vcc, s{sTAG}, v5", f"s_add_u32 s{sT3}, s{sT3}, 1", f"s_cmp_ge_u32 s{sT3}, {BOUND}", "s_cbranch_scc1 L_go1", "s_and_b32 vcc_lo, vcc_lo, 15", "s_cbranch_scc1 L_apoll1", "s_branch L_go1")]
        else:
            S.append(Op(pl, "load", wr=["v5"], chain="vm", sub=1, earliest=gB, latest=gB))
            S.append(V(f"v_cmp_ne_u32 vcc, s{sTAG if wt else sTAGL}, v5", ["vcc"], ["v5"], earliest=gC - 2, latest=gC - 2))
        if not c["a1"]: go = Op("s_cbranch_vccnz L_wait1\nL_go1:", "cbr", rd=["vcc"], earliest=gC, latest=gC); S.append(go)
        s.retry += [Op(x, "label" if x.endswith(":") else "salu") for x in
                    ("L_wait1:", f"s_mov_b32 s{sT3}, 0", "L_poll1:", pl, "s_waitcnt vmcnt(0)", f"v_cmp_ne_u32 vcc, s{sTAG}, v5", f"s_add_u32 s{sT3}, s{sT3}, 1", "s_nop 2",
                     "s_cbranch_vccz L_seen1", f"s_cmp_lt_u32 s{sT3}, {BOUND}", "s_cbranch_scc1 L_poll1", "L_seen1:") + (() if wt else (f"s_cmp_eq_u32 s{sTAGL}, s{sTAG}", "s_cbranch_scc1 L_go1",
                     "buffer_inv sc1", "s_waitcnt vmcnt(0)")) + ("s_branch L_go1",)]
        seq = [(1, 0), (1, 1), (1, 2), (2, 0), (3, 0), (2, 1), (3, 1), (2, 2), (3, 2)] if not c["ord2"] else ([(i, t) for t in range(3) for i in (1, 2, 3)] if O3 else [(i, t) for i in (1, 2, 3) for t in range(3)])
        for n, (i, t) in enumerate(seq):
            n0 = len(S); nb = c.get("oburst", 0); np_ = max(0, (94 - gC - 2 + 3) // 16); so = (sXO, sKO, sVO, sWO)[n % 4]
            if n < np_ or not nb: oload(i, t, S, gC + 2 + 16 * n, so=so)
            elif n < np_ + nb: oload(i, t, S, 94, so=so, step=0)
            else: oload(i, t, S, 97 + 16 * (n - nb - np_), so=so)
            for o in S[n0 + 1:]: o.after = [go]
        g_ = c.get("gP1", 80) if O3 else 98
        P1 = Op("s_barrier", "bar", earliest=g_, latest=g_); P1.need_vm = s.wo_hi; S.append(P1)
        for t in range(0 if O3 else 3):
            for T in range(nT): chain(S, 1, T, t)
            if t == 0:
                for T in range(nT, 8): unit(S, 1, T)
            if nT == 8 and t == 2:
                if c["ord2"]:
                    for T in range(1, 5): unit(S, 2, T, [P1])
                else: unit(S, 2, 1, [P1]); unit(S, 3, 1, [P1])
        g1 = list(range(1, 1 + (4 if c["ord2"] else 3)))
        for T in range(nT, 8):
            for t in range(3): chain(S, 1, T, t)
            if c["ord2"]: unit(S, 2, g1[T - 4], [P1])
            elif T == 4: unit(S, 2, g1[0], [P1]); unit(S, 3, g1[0], [P1])
        s.pstores = []
        def publish(T, t):
            A = acc(0, T) if t < 2 else acc(2, T); src = acc(t, T); d = A + (2 if t == 1 else 0)
            for p in range(2): S.append(V(f"v_cvt_pk_bf16_f32 v{d+p}, v{src+2*p}, v{src+2*p+1}", [f"v{d+p}"], [f"v{src+2*p}", f"v{src+2*p+1}"]))
            if t == 1: o = Op(f"buffer_store_dwordx4 {rng('v', A, 4)}, v{VL16}, s[{RWS}:{RWS+3}], s{sPS+T-1} offen sc1", "store", rd=R("v", A, 4), chain="vm", tag=c["ptag"])
            elif t == 2: o = Op(f"buffer_store_dwordx2 {rng('v', A, 2)}, v241, s[{RWS}:{RWS+3}], s{sPS+T-1} offen offset:1024 sc1", "store", rd=R("v", A, 2), chain="vm", tag=c["ptag"])
            else: return
            S.append(o); s.pstores.append(o)
        if O3:
            g1 = [1, 2, 3]
            order = (2, 3, 0, 4, 5, 1)
            for n, (T, i) in enumerate((T, i) for T in g1 for i in (2, 3)): unit(S, i, T, [P1], H23[(0, 3, 4, 5, 2, 1)[n]])
            for t in range(3):
                for T in range(1 if c["last0"] else 0, 8): chain(S, 1, T, t)
                for T in g1: chain(S, 2, T, t); chain(S, 3, T, t); publish(T, t)
            ring[:] = H1[1:] if c["last0"] else H1; rp[0] = 0
        elif c["ord2"]:
            for t in range(3):
                for T in g1: chain(S, 2, T, t)
                if t == 0:
                    for T in g1: unit(S, 3, T, [P1])
            for t in range(3):
                for T in g1: chain(S, 3, T, t); publish(T, t)
        else:
            for T in g1[1:]: unit(S, 2, T, [P1]); unit(S, 3, T, [P1])
            for t in range(3):
                for T in g1:
                    chain(S, 2, T, t); chain(S, 3, T, t); publish(T, t)
        rest = [T for T in range(1, 8) if T not in g1] + [0]
        for T in rest:
            unit(S, 2, T, [P1]); unit(S, 3, T, [P1])
            for t in range(3):
                if T == 0 and O3 and c["last0"]: chain(S, 1, T, t)
                chain(S, 2, T, t); chain(S, 3, T, t)
                if T: publish(T, t)
        RA_ = lambda T: OF + (T - 1) * 4
        RB_ = lambda T: OF + 28 + (T - 1) * 2
        def inbox(T):
            return [Op(f"s_add_u32 s{sXO}, s{sPL}, {(T-1)*1536}", "salu", wr=[f"s{sXO}"]),
                    Op(f"buffer_load_dwordx4 {rng('v', RA_(T), 4)}, v{VL16}, s[{RWS}:{RWS+3}], s{sXO} offen sc1", "load", rd=[f"s{sXO}"], wr=R("v", RA_(T), 4)),
                    Op(f"buffer_load_dwordx2 {rng('v', RB_(T), 2)}, v241, s[{RWS}:{RWS+3}], s{sXO} offen offset:1024 sc1", "load", rd=[f"s{sXO}"], wr=R("v", RB_(T), 2))]
        F = []
        if c["opp"]:
            X = 0xF0 - 8 - 0; X = 232 - 0
            X = QF; e = dict(earliest=300)
            S += [V(f"v_lshrrev_b32 v0, 4, v{VL16}", ["v0"], [], **e), V("v_bfe_u32 v1, v0, 2, 2", ["v1"], ["v0"], **e), V("v_lshrrev_b32 v2, 4, v0", ["v2"], ["v0"], **e),
                  V("v_and_b32 v3, 1, v0", ["v3"], ["v0"], **e), V("v_lshlrev_b32 v3, 4, v3", ["v3"], ["v3"], **e), Op(f"s_movk_i32 s{sT2}, 0x3f80", "salu", wr=[f"s{sT2}"], **e),
                  V(f"v_lshlrev_b32 v3, v3, s{sT2}", ["v3"], ["v3", f"s{sT2}"], **e), V("v_cmp_eq_u32 vcc, v1, v2", ["vcc"], ["v1", "v2"], **e),
                  V("v_cndmask_b32 v3, 0, v3, vcc", ["v3"], ["v3", "vcc"], **e), V("v_and_b32 v1, 2, v0", ["v1"], ["v0"], **e), V("v_cmp_eq_u32 vcc, 0, v1", ["vcc"], ["v1"], **e),
                  V("v_cndmask_b32 v2, 0, v3, vcc", ["v2"], ["v3", "vcc"], **e), V("v_sub_u32 v3, v3, v2", ["v3"], ["v3", "v2"], **e),
                  V("v_and_b32 v1, 7, v0", ["v1"], ["v0"], **e), V(f"v_xor_b32 v1, s{sHQ}, v1", ["v1"], ["v1"], **e), V(f"v_lshl_add_u32 v1, v1, 2, s{sJ}", ["v1"], ["v1"], **e), V(f"v_mul_u32_u24 v1, {4 * c['lp']}, v1", ["v1"], ["v1"], **e),
                  V("v_cmp_lt_u32 vcc, 7, v0", ["vcc"], ["v0"], **e), V("v_cndmask_b32 v1, v1, v4, vcc", ["v1"], ["v1", "vcc", "v4"], **e), V("v_mov_b32 v5, 0", ["v5"], [], **e)]
            pl = f"buffer_atomic_or v5, v1, s[{RWS}:{RWS+3}], s{sF2} offen sc0 sc1"
            if c["gP"]: S.append(Op(pl, "load", rd=["v1", "v5"], wr=["v5"], chain="vm", earliest=c["gP"]))
            for n, src in enumerate(("v2", "v3", "0", "0", "v2", "v3", "v2", "v3")): F.append(V(f"v_mov_b32 v{X+n}, {src}", [f"v{X+n}"], ["v2", "v3"]))
            F += [V(f"v_mov_b32 v{RB_(8)+n}, 0", [f"v{RB_(8)+n}"], []) for n in range(2)]
            raw = lambda t_, kind="salu", **k_: Op(t_, kind, **k_)
            w0 = raw("s_waitcnt vmcnt(0)", "wait"); w0.waitall = "vm"
            F += [V(f"v_mov_b32 v{X+8+n}, s{sTAG}", [f"v{X+8+n}"], []) for n in range(4)]
            F += [raw(f"s_mov_b32 s{sKO}, 0xffffff01"), raw(f"s_mov_b32 s{sT3}, 0"), w0, raw("s_mov_b64 exec, 0xff"),
                  raw(f"buffer_store_dwordx4 {rng('v', X + 8, 4)}, v{VL16}, s[{RWS}:{RWS+3}], s{sOWN} offen sc1"), raw("s_mov_b64 exec, -1")]
            F += s.stamp2("fl2")
            F += [Op("L_look:", "label"), V(f"v_cmp_eq_u32 vcc, s{sTAG}, v5", ["vcc"], []), raw("s_nop 3"), raw(f"s_andn2_b32 s{sVO}, vcc_lo, s{sKO}"), raw(f"s_or_b32 s{sKO}, s{sKO}, s{sVO}")]
            for T in range(1, 8):
                F += [raw(f"s_bitcmp1_b32 s{sVO}, {T}"), raw(f"s_cbranch_scc0 L_skip{T}", "branch")] + [raw(o.text) for o in inbox(T)] + [Op(f"L_skip{T}:", "label")]
            K = c["npoll"]; PV_ = X + 12
            pk_ = lambda n: f"v_mov_b32 v{PV_+n}, 0\n    " + pl.replace("v5,", f"v{PV_+n},")
            F += [raw(f"s_and_b32 s{sVO}, s{sKO}, 0xff"), raw(f"s_cmp_eq_u32 s{sVO}, 0xff"), raw("s_cbranch_scc1 L_all", "branch")]
            for n in range(K): F += [raw(pk_(n))] + ([raw(f"s_sleep {c['slp']}")] if n < K - 1 and c.get("slp") else [])
            F.append(Op("L_spin:", "label"))
            for n in range(K):
                F += [raw(f"s_waitcnt vmcnt({K-1})"), raw(f"v_mov_b32 v5, v{PV_+n}"), raw(f"v_cmp_eq_u32 vcc, s{sTAG}, v{PV_+n}"), raw("s_nop 3"),
                      raw(f"s_andn2_b32 s{sVO}, vcc_lo, s{sKO}"), raw("s_cbranch_scc1 L_look", "branch")] + ([raw(f"s_sleep {c['slp2']}")] if c.get("slp2") else []) + [raw(pk_(n))]
            F += [raw(f"s_add_u32 s{sT3}, s{sT3}, 1"), raw(f"s_cmp_lt_u32 s{sT3}, {BOUND}"), raw("s_cbranch_scc1 L_spin", "branch"), Op("L_all:", "label")] + s.stamp2("go2")
            F += [raw(f"s_or_b32 s{sT1}, s{sH}, s{sW}"), raw(f"s_cbranch_scc1 L_keep", "branch"), raw(f"s_lshl_b32 s{sT1}, s{sB}, 12"), raw(f"s_add_u32 s{sT1}, s{sT1}, {GEN_OFF}"),
                  raw("s_mov_b64 exec, 0xff"), raw(f"buffer_store_dwordx4 {rng('v', X + 8, 4)}, v{VL16}, s[{RWS}:{RWS+3}], s{sT1} offen sc1"), raw("s_mov_b64 exec, -1"),
                  raw("s_waitcnt vmcnt(1)"), raw("s_branch L_sum", "branch"), Op("L_keep:", "label"), raw("s_waitcnt vmcnt(0)", "wait"), Op("L_sum:", "label")]
            for t in range(2):
                for T in range(1, 8): F.append(mfma(("v", acc(t, 0)), ("v", X + 2 * t), ("v", RA_(T)), ("v", acc(t, 0))))
            for T in range(1, 8, 2): F.append(mfma(("v", acc(2, 0)), ("v", X + 4), ("v", RB_(T)), ("v", acc(2, 0))))
        for t in range(3):
            A = acc(t, 0)
            for p in range(2): F.append(V(f"v_cvt_pk_bf16_f32 v{A+p}, v{A+2*p}, v{A+2*p+1}", [f"v{A+p}"], [f"v{A+2*p}", f"v{A+2*p+1}"]))
            F.append(Op(f"s_mov_b32 s{sKO}, {t*16384}", "salu", wr=[f"s{sKO}"]))
            F.append(Op(f"buffer_store_dwordx2 {rng('v', A, 2)}, v251, s[{ROUT}:{ROUT+3}], s{sKO} offen", "store", rd=R("v", A, 2) + ["v251", f"s{sKO}"]))
        s.fin2 = F
        return S
    def slowpath(s):
        L = []; a = L.append
        raw = lambda t, kind="salu", **k: a(Op(t, kind, **k))
        va = lambda t, wr, rd=(), **k: a(V(t, wr, rd, **k))
        a(Op("L_slow:", "label")); w = Op("s_waitcnt vmcnt(0) lgkmcnt(0)", "wait"); w.waitall = True; a(w)
        ln, g, i_ = "v0", "v1", "v2"
        va(f"v_lshrrev_b32 v0, 4, v{VL16}", [ln]); va("v_lshrrev_b32 v1, 4, v0", [g]); va("v_and_b32 v2, 15, v0", [i_])
        va("v_and_b32 v3, 1, v1", ["v3"]); va("v_lshrrev_b32 v4, 1, v1", ["v4"]); va("v_lshl_add_u32 v3, v3, 1, v4", ["v3"])
        va("v_lshlrev_b32 v3, 4, v3", ["v3"]); va(f"v_lshl_add_u32 v{KA}, v2, 8, v3", [f"v{KA}"])
        va("v_lshlrev_b32 v3, 1, v1", ["v3"]); va("v_xor_b32 v3, v3, v2", ["v3"]); va("v_lshlrev_b32 v3, 4, v3", ["v3"])
        va(f"v_lshl_add_u32 v{VD}, v1, 8, v3", [f"v{VD}"]); va(f"v_xor_b32 v{VD+1}, 128, v{VD}", [f"v{VD+1}"])
        sp_ = s.spare
        raw(f"s_mov_b32 s{sVO}, {sp_[0]*8192}")
        for w_ in range(1, 4): raw(f"s_cmp_eq_u32 s{sW}, {w_}"); raw(f"s_cselect_b32 s{sVO}, {sp_[w_]*8192}, s{sVO}")
        raw(f"s_sub_u32 s{sT3}, s{sVO}, {VBASE}")
        for T in range(8): va(f"v_add_u32 v{232+T}, s{sT3}, v{VA+T}", [f"v{232+T}"])
        def kload():
            raw(f"s_add_u32 s{sT2}, s{sT1}, 4096", wr=[f"s{sT2}"])
            for kt in range(2):
                for ds in range(4):
                    a(Op(f"buffer_load_dwordx4 {rng('a', (kt*4+ds)*4, 4)}, v{KA}, s[{RK}:{RK+3}], s{(sT1, sT2)[kt]} offen offset:{ds*64}", "load", wr=R("a", (kt*4+ds)*4, 4)))
        def qk(cneg):
            for t in range(3):
                for kt in range(2):
                    for ds in range(4):
                        a(mfma(("v", sS(t, kt)), ("a", (kt*4+ds)*4), ("v", QF + (t*4+ds)*4), ("v", sS(t, kt)) if ds else (("v", NM + 4*t) if cneg else None)))
        def loop(lbl):
            raw("s_nop 7"); raw(f"s_add_u32 s{sT1}, s{sT1}, 8192"); raw(f"s_cmp_lt_u32 s{sT1}, 0x20000"); a(Op(f"s_cbranch_scc1 {lbl}", "branch"))
        for t in range(3): va(f"v_mov_b32 v{t}, 0xff800000", [f"v{t}"])
        raw(f"s_mov_b32 s{sT1}, 0"); a(Op("L_s1:", "label")); kload(); qk(False)
        for t in range(3):
            r = [f"v{sS(t, 0)+i}" for i in range(8)]
            for p in range(4): va(f"v_max3_f32 v{t}, v{t}, {r[2*p]}, {r[2*p+1]}", [f"v{t}"], [f"v{t}", r[2*p], r[2*p+1]])
        loop("L_s1")
        for t in range(3):
            m, tm = f"v{t}", "v3"
            for sw in ("16", "32"):
                va(f"v_mov_b32 {tm}, {m}", [tm], [m]); va(f"v_permlane{sw}_swap_b32 {m}, {tm}", [m, tm], [m, tm], kind="perm"); va(f"v_max_f32 {m}, {m}, {tm}", [m], [m, tm])
            for i in range(4): va(f"v_sub_f32 v{NM+4*t+i}, 0, {m}", [f"v{NM+4*t+i}"], [m])
        for r in range(ACC, LS + 12): va(f"v_mov_b32 v{r}, 0", [f"v{r}"])
        raw(f"s_mov_b32 s{sT1}, 0"); a(Op("L_s2:", "label")); kload()
        for hf in range(2):
            raw(f"s_add_u32 m0, s{sVO}, {hf*4096}", wr=["m0"])
            for i in range(4):
                a(Op(f"buffer_load_dwordx4 v{VD+(i&1)}, s[{RV}:{RV+3}], s{(sT1, sT2)[hf]} offen offset:{i*1024} lds", "dma", rd=["m0"], lds_wr=["SV"]))
        qk(True)
        for t in range(3):
            for i in range(8): va(f"v_exp_f32 v{sS(t,0)+i}, v{sS(t,0)+i}", [f"v{sS(t,0)+i}"], [f"v{sS(t,0)+i}"], kind="trans")
            for p in range(4): va(f"v_cvt_pk_bf16_f32 v{PP+4*t+p}, v{sS(t,0)+2*p}, v{sS(t,0)+2*p+1}", [f"v{PP+4*t+p}"], [f"v{sS(t,0)+2*p}", f"v{sS(t,0)+2*p+1}"])
        for T in range(8):
            for r in range(2):
                a(Op(f"ds_read_b64_tr_b16 {rng('a', 32+T*4+2*r, 2)}, v{232+T} offset:{r*4096}", "ds", rd=[f"v{232+T}"], wr=R("a", 32+T*4+2*r, 2), lds_rd=["SV"]))
        for t in range(3):
            a(mfma(("v", LS+4*t), ("v", ONES), ("v", PP+4*t), ("v", LS+4*t)))
            for T in range(8): a(mfma(("v", acc(t, T)), ("a", 32+T*4), ("v", PP+4*t), ("v", acc(t, T))))
        loop("L_s2")
        for t in range(3): s.oepi(t, L, check=False)
        a(Op("s_waitcnt vmcnt(0) lgkmcnt(0)", "wait")); a(Op("s_branch L_back", "branch"))
        L = insert_waits(L, hoist=False); L, _ = insert_nops(L)
        return L
    def stamp2(s, name): return [Op("@ST" + name, "label")] if s.c["stamps"] else []
    def stamp(s, name):
        if not s.c["stamps"]: return []
        k = len(s.names); s.names.append(name)
        return [Op(f"v_writelane_b32 v252, s{STAMP}, {k-1}", "valu", tag="st"), Op(f"{s.c.get('clk', 's_memrealtime')} s[{STAMP}:{STAMP+1}]", "salu", tag="st")]
    def build(s):
        c = s.c
        S1 = s.stream1(); P1 = schedule(S1)
        used = {s.blk[f"o{kk}"] for kk in range(16) if f"o{kk}" in s.blk}
        fr = [b_ for b_ in range(20) if b_ not in used]
        late = []
        for kk in s.wo_left: s.blk[f"o{kk}"] = fr.pop(); late.append(kk)
        assert all(kk >= 8 for kk in late)
        s.spare = fr[:4]
        SLOW = s.slowpath() if c["slow"] else []
        LATE = []
        for kk in late: s.D[f"o{kk}"] = s.dWO(LATE, kk)
        s.wo_hi = [o for kk in range(8, 16) for o in s.D[f"o{kk}"]]
        S2 = s.stream2(); P2 = schedule(S2, mlat=7)
        s.names = ["start"]
        hd = s.headgroups
        L = s.prologue() + sum(hd[:c["nhead1"]], []) + s.stamp("iss1") + s.prologue2() + s.stamp("pro2") + sum(hd[c["nhead1"]:], []) + s.stamp("issued") + [Op("@WARM", "label")]
        n = 0; nb = 0
        for o in P1:
            if o.kind == "mfma":
                if n == 384: L += s.stamp("att0")
                n += 1
                if n == 384 + 24 + 15 * 51 + 27: L.append(o); L += s.stamp("lastpv"); continue
            L.append(o)
            if o.kind == "bar":
                if not c.get("st2"): L += s.stamp(f"b{nb}")
                nb += 1
        L += s.stamp("epi")
        raw = lambda t, kind="salu", **k: Op(t, kind, **k)
        bb = Op("s_barrier", "bar"); bb.need_vm = [o for kk in range(8) for o in s.D[f"o{kk}"]]
        L += [raw("s_waitcnt lgkmcnt(0)", "wait"), bb]
        if c["slow"]:
            L += [Op(f"s_or_b64 s[{sCK}:{sCK+1}], s[{sCK}:{sCK+1}], s[{sCK+2}:{sCK+3}]", "salu", rd=R("s", sCK, 4)),
                  Op(f"s_or_b64 s[{sCK}:{sCK+1}], s[{sCK}:{sCK+1}], s[{sCK+4}:{sCK+5}]", "salu", rd=R("s", sCK, 6)),
                  Op("s_cbranch_scc1 L_slow", "branch"), Op("L_back:", "label")]
        L += LATE
        L += s.pre2 + [V(f"v_mov_b32 v6, s{sTAG}", ["v6"], []), V("v_mov_b32 v4, 0x7ffffff0", ["v4"], [])]
        L += [V("v_mov_b32 v7, 0", ["v7"], [])]
        n = 0
        for o in P2:
            if o.kind == "mfma":
                if (n in c["st2"] if c.get("st2") else n % 48 == 0): L += s.stamp(f"h{n}" if c.get("st2") else f"h{n//48}")
                n += 1
            L.append(o)
        L += s.stamp("p2end")
        for o in s.fin2: L += s.stamp(o.text[3:]) if o.text.startswith("@ST") else [o]
        if c["stamps"]:
            L += [raw("s_waitcnt vmcnt(0)", "wait")] + s.stamp("end") + [raw("s_waitcnt lgkmcnt(0)", "wait")] + s.stamp("x")[:1]
            s.names.pop()
            L += [raw(f"s_cmp_lg_u32 s{sW}, {c.get('stw', 0)}"), Op("s_cbranch_scc1 L_end", "branch"),
                  raw(f"s_mov_b32 s{RWS+2}, 0x10000000"),
                  raw(f"s_lshl_b32 s{sT1}, s2, 8"), raw(f"s_add_u32 s{sT1}, s{sT1}, {STAMP_OFF}"),
                  V(f"v_lshrrev_b32 v4, 2, v{VL16}", ["v4"], []), Op(f"buffer_store_dword v252, v4, s[{RWS}:{RWS+3}], s{sT1} offen", "store", rd=["v252"])]
        L += [Op("L_end:", "label"), Op("s_endpgm", "branch"), Op("L_codeend:", "label")]
        L = insert_waits(L)
        log = []; L, nn = insert_nops(L, log)
        s.nmain = len(L); L += s.retry + SLOW
        s.log = log; s.L = L
        return L
    def pagewarm(s, L):
        import subprocess, re
        iw = next(i for i, o in enumerate(L) if o.text == "@WARM")
        if not s.c["pw"]: return L[:iw] + L[iw + 1:]
        body = L[iw + 1:s.nmain]
        src = '.amdgcn_target "amdgcn-amd-amdhsa--gfx950"\n.text\n' + "".join(o.text + "\n" for o in L if o.text != "@WARM")
        open("_sz.s", "w").write(src)
        subprocess.run(["clang", "-x", "assembler", "-target", "amdgcn-amd-amdhsa", "-mcpu=gfx950", "-c", "_sz.s", "-o", "_sz.o"], check=True)
        d = subprocess.run(["llvm-objdump", "-d", "--mcpu=gfx950", "_sz.o"], capture_output=True, text=True).stdout
        sz = [4 * len(m.group(1).split()) for m in re.finditer(r"// [0-9A-F]{12}: ([0-9A-F ]+)", d)]
        size = {}; p_ = 0
        for o in L:
            if o.kind == "label": continue
            n_ = sum(1 for x in o.text.split("\n") if not x.endswith(":")); size[o] = sum(sz[p_:p_ + n_]); p_ += n_
        assert p_ == len(sz), (p_, len(sz))
        out = []; pos = 0; npg = 0
        for i, o in enumerate(body):
            if pos >= 4096 * npg:
                ahead = pos; ok = out and out[-1].kind == "mfma"
                if not ok:
                    p = pos; later = False
                    for q in body[i:i + 16]:
                        p += size.get(q, 0)
                        if p > 4096 * npg + 56: break
                        if q.kind == "mfma": later = True; break
                    ok = not later
                if ok: out += [Op(f"L_pg{npg}:", "label"), Op(f"@PG{npg}", "branch")]; npg += 1; pos += 4
            out.append(o); pos += size.get(o, 0)
        for o in out:
            if o.text.startswith("@PG"):
                n = int(o.text[3:]); o.text = f"s_cbranch_execz " + (f"L_pg{n+4}" if n + 4 < npg else "L_warmed")
        hop = [Op("s_mov_b64 exec, 0", "salu")]
        for w in range(3): hop += [Op(f"s_cmp_eq_u32 s{sW}, {w}", "salu"), Op(f"s_cbranch_scc1 L_pg{w}", "branch")]
        hop += [Op("s_branch L_pg3", "branch"), Op("L_warmed:", "label"), Op("s_mov_b64 exec, -1", "salu"), Op("s_branch L_main", "branch"),
                Op(".p2align 12", "label"), Op("L_main:", "label")]
        n0 = s.nmain; s.nmain = iw + len(hop) + len(out)
        return L[:iw] + hop + out + L[n0:]
    def text(s):
        L = s.build(); L = s.L = s.pagewarm(L)
        hdr = open("standalone__mha_block_cached__near_ridge.s.ref").read().split("; Override")[0]
        t = hdr + ("; stamps: " + " ".join(s.names) + "\n" if s.c["stamps"] else "") + "; @launch grid=(256,1,1) block=(256,1,1) lds=163840\n"
        t += f'.amdgcn_target "amdgcn-amd-amdhsa--gfx950"\n.text\n.globl {KN}\n.p2align 8\n.type {KN},@function\n{KN}:\n'
        t += "".join((o.text if o.kind == "label" else "    " + o.text) + "\n" for o in L)
        t += (f'.section .rodata,"a"\n.p2align 6\n.amdhsa_kernel {KN}\n  .amdhsa_next_free_vgpr 512\n  .amdhsa_next_free_sgpr 102\n  .amdhsa_accum_offset 256\n'
              "  .amdhsa_group_segment_fixed_size 0\n  .amdhsa_kernarg_size 64\n  .amdhsa_user_sgpr_count 2\n  .amdhsa_user_sgpr_kernarg_segment_ptr 1\n"
              "  .amdhsa_system_sgpr_workgroup_id_x 1\n.end_amdhsa_kernel\n")
        return t

def summary(g):
    L = g.L[:g.nmain]; mi = [i for i, o in enumerate(L) if o.kind == "mfma"]; n1 = 1200
    return " ".join(f"{n} {estimate(L[a:b])}" for n, a, b in (("qproj", mi[0], mi[384]), ("attn", mi[384], mi[n1-1] + 1), ("epi", mi[n1-1], mi[n1]), ("r0", mi[n1], mi[n1+95] + 1), ("r123", mi[n1+96], mi[n1+383] + 1), ("tail", mi[n1+383], len(L))))
if __name__ == "__main__":
    out = sys.argv[1]; cfg = json.loads(sys.argv[2]) if len(sys.argv) > 2 else {}
    g = Gen(**cfg); t = g.text(); open(out, "w").write(t)
    print(" ".join(f"{n}@{gs[0]}" for n, gs, d in g.plan)); print("xrd", g.xrd, "blk", g.blk, "left", g.wo_left, "spare", g.spare)
    L = g.L[:g.nmain]; mi = [i for i, o in enumerate(L) if o.kind == "mfma"]
    n1 = 384 + 24 + 15 * 51 + 27
    print("ops", len(L), "mfma", len(mi), "nops", g.log[:40], len(g.log))
    print("est cycles: qproj", estimate(L[mi[0]:mi[384]]), "attn", estimate(L[mi[384]:mi[n1 - 1] + 1]), "attn tail", estimate(L[mi[n1-1]:mi[n1]]),
          "r0", estimate(L[mi[n1]:mi[n1+95] + 1]), "r1-3", estimate(L[mi[n1+96]:mi[-1] + 1]), "tail", estimate(L[mi[-1]:]))
```

```python
import re
from collections import defaultdict

def R(p, a, n=1): return [f"{p}{i}" for i in range(a, a + n)]
def rng(p, a, n): return f"{p}{a}" if n == 1 else f"{p}[{a}:{a+n-1}]"

class Op:
    __slots__ = ("text", "kind", "rd", "wr", "c", "lds_rd", "lds_wr", "need_vm", "need_lgkm", "earliest", "latest", "after",
                 "idx", "gap", "preds", "succs", "dl", "tag", "chain", "sub", "waitall")
    def __init__(s, text, kind, rd=(), wr=(), c=(), lds_rd=(), lds_wr=(), earliest=None, latest=None, after=(), tag="", chain=None, sub=None):
        s.text, s.kind, s.rd, s.wr, s.c = text, kind, list(rd), list(wr), list(c)
        s.lds_rd, s.lds_wr = list(lds_rd), list(lds_wr)
        s.need_vm, s.need_lgkm = [], []
        s.earliest, s.latest, s.after, s.tag, s.chain, s.sub = earliest, latest, list(after), tag, chain, sub
        s.gap = None; s.waitall = False
    def __repr__(s): return f"<{s.kind}:{s.text}>"

VALU = ("valu", "trans", "perm")
VM = ("dma", "load", "store")
COST = {"valu": 4, "trans": 8, "perm": 8, "ds": 4, "dsw": 4, "dma": 4, "load": 4, "store": 4}
MEM = ("ds", "dsw", "dma", "load", "store")
MEM2 = 2
SCAL = ("salu", "bar", "wait", "cbr")

MLAT = [4]
def lat(p, s, typ):
    if typ == "raw":
        if p.kind == "mfma":
            if s.kind == "mfma": return 0
            return MLAT[0]
        if p.kind == "ds": return p.sub or 6
        if p.kind == "load": return p.sub or 30
        if p.kind == "dma": return 0
        if p.kind == "salu" and s.kind in VM: return 1
        if s.kind == "cbr": return 2
        if p.kind in VALU and s.kind in ("ds", "dsw", "dma", "load", "store"): return 1
        if p.kind in VALU and s.kind == "perm": return 1
        if p.kind == "trans" and s.kind == "valu": return 1
        if p.kind in VALU and s.kind == "mfma": return 1
        return 0
    if typ == "war":
        if p.kind == "store" : return 1
        if p.kind in VM and s.kind == "salu": return 1
        if p.kind == "mfma" and s.kind in VALU: return 0
        return 0
    if typ == "ldswar": return 6
    if typ == "waw":
        if p.kind == "mfma" and s.kind != "mfma": return 4
        return 0
    return 0

def build_dag(ops):
    lastw, readers = {}, defaultdict(list)
    lw_l, rd_l = {}, defaultdict(list)
    chains = {}
    for i, o in enumerate(ops):
        o.idx = i; o.preds = {}; o.succs = {}
    inside = set(ops)
    def edge(p, s, l):
        if p is s or p not in inside: return
        if s.preds.get(p, -1) < l: s.preds[p] = l; p.succs[s] = l
    for o in ops:
        for r in o.rd + o.c:
            if r in lastw: edge(lastw[r], o, lat(lastw[r], o, "raw"))
        for r in o.wr:
            if r in lastw: edge(lastw[r], o, lat(lastw[r], o, "waw"))
            for q in readers[r]: edge(q, o, lat(q, o, "war"))
        for r in o.lds_rd:
            if r in lw_l: edge(lw_l[r], o, 0)
        for r in o.lds_wr:
            if r in lw_l: edge(lw_l[r], o, 0)
            for q in rd_l[r]: edge(q, o, lat(q, o, "ldswar"))
        for p in o.after: edge(p, o, 0)
        for p in o.need_vm: edge(p, o, 0)
        for p in o.need_lgkm: edge(p, o, 5)
        if o.chain is not None:
            if o.chain in chains: edge(chains[o.chain], o, 0)
            chains[o.chain] = o
        for r in o.rd + o.c: readers[r].append(o)
        for r in o.wr: lastw[r] = o; readers[r] = []
        for r in o.lds_rd: rd_l[r].append(o)
        for r in o.lds_wr: lw_l[r] = o; rd_l[r] = []

def schedule(ops, verbose=False, mlat=4):
    MLAT[0] = mlat
    build_dag(ops)
    M = [o for o in ops if o.kind == "mfma"]
    for g, m in enumerate(M): m.gap = g
    n = len(M)
    F = [o for o in ops if o.kind != "mfma"]
    INF = n + 1000
    hard = {}
    for o in reversed(ops):
        if o.kind == "mfma": continue
        d, h = INF, INF
        for s, l in o.succs.items():
            if s.kind == "mfma": d = min(d, s.gap - 1 - l); h = min(h, s.gap - 1)
            else: d = min(d, s.dl - l); h = min(h, hard[s])
        if o.latest is not None: d = min(d, o.latest)
        o.dl = min(d, h); hard[o] = h
    placed = set(); gaps = defaultdict(list); pending = list(F)
    def ready(o, g, strict=True):
        for p, l in o.preds.items():
            if p.gap is None: return False
            if p.kind == "mfma":
                if p.gap + (l if strict else 0) > g: return False
            elif p.gap + (l if strict else 0) > g: return False
        return True
    for g in range(-1, n):
        last = g == n - 1
        used = 0; scal = 0; nv = 0; nmem = 0
        while True:
            best = None
            for o in pending:
                forced = hard[o] <= g or last
                if not forced and o.earliest is not None and o.earliest > g: continue
                if not ready(o, g, strict=not forced): continue
                urgent = forced or o.dl <= g or o.tag == "asap"
                if g >= 0 and not urgent:
                    if o.kind in SCAL:
                        if scal >= 1: continue
                    else:
                        c = COST[o.kind]
                        if used + c > 8: continue
                        if o.kind == "valu" and nv >= 1 and o.dl > g + 3 and o.tag != "eager": continue
                        if o.kind in MEM and nmem >= 1 and o.dl > g + MEM2: continue
                elif g < 0 and not urgent and o.earliest is None and False: continue
                key = (0 if forced or o.tag == "asap" else 1, o.dl, o.idx)
                if best is None or key < best[0]: best = (key, o)
            if best is None: break
            o = best[1]
            if g < 0 and not (hard[o] <= g or o.dl <= g or (o.earliest is not None and o.earliest < 0)):
                cand = [x for x in pending if (hard[x] <= g or x.dl <= g or (x.earliest is not None and x.earliest < 0)) and ready(x, g, strict=False)]
                if not cand: break
                o = min(cand, key=lambda x: x.idx)
            o.gap = g; gaps[g].append(o); pending.remove(o)
            if o.kind in SCAL: scal += 1
            else:
                used += COST[o.kind]
                if o.kind == "valu": nv += 1
                if o.kind in MEM: nmem += 1
    assert not pending, pending[:5]
    out = []
    cls = lambda o: 0 if o.kind in SCAL else (1 if o.kind in ("ds", "dsw", "dma", "load", "store") else 2)
    for g in range(-1, n):
        if g >= 0: out.append(M[g])
        L = gaps[g]
        if g < 0 or g == n - 1:
            L = sorted(L, key=lambda o: o.idx) if g < 0 else L
            out += L; continue
        rem = list(L); S = set(L)
        while rem:
            c = [o for o in rem if not any(p in S and p in rem for p in o.preds)]
            o = min(c, key=lambda o: (cls(o), o.idx)); out.append(o); rem.remove(o)
    pos = {o: i for i, o in enumerate(out)}
    for o in ops:
        for p in o.preds: assert pos[p] < pos[o], (p, o)
    return out

def insert_waits(seq, hoist=True):
    out = []
    vm, lg = [], []
    vmdone = lgdone = -1
    ordv, ordl = {}, {}
    regw = {}
    ldsw = {}; ldsr = defaultdict(list)
    lastm = -1; mpos = []
    for o in seq:
        nv, nl = -1, -1
        def need(p):
            nonlocal nv, nl
            if p in ordv: nv = max(nv, ordv[p])
            elif p in ordl: nl = max(nl, ordl[p])
        for r in o.rd + o.c + o.wr:
            if r in regw: need(regw[r])
        for r in o.lds_rd:
            if r in ldsw: need(ldsw[r])
        for r in o.lds_wr:
            for q in ldsr[r]: need(q)
            if r in ldsw and ldsw[r].kind != o.kind: need(ldsw[r])
        for p in o.need_vm + o.need_lgkm: need(p)
        if nv > vmdone or nl > lgdone:
            at = len(out)
            if hoist and lastm >= 0 and o.kind not in ("bar",):
                h = lastm + 1
                ok = (nv <= vmdone or vm[nv] < h) and (nl <= lgdone or lg[nl] < h)
                ok = ok and not any(x.kind in ("label", "branch", "bar", "cbr") for x in out[h:])
                if ok: at = h
            parts = []
            if nv > vmdone:
                cnt = sum(1 for x in vm[nv + 1:] if x < at); cnt = min(cnt, 63)
                issued = sum(1 for x in vm if x < at)
                vmdone = issued - cnt - 1; parts.append(f"vmcnt({cnt})")
            if nl > lgdone:
                if len(mpos) > 9:
                    old = mpos[-9]
                    while nl + 1 < len(lg) and lg[nl + 1] < old: nl += 1
                cnt = sum(1 for x in lg[nl + 1:] if x < at); cnt = min(cnt, 15)
                issued = sum(1 for x in lg if x < at)
                lgdone = issued - cnt - 1; parts.append(f"lgkmcnt({cnt})")
            w = Op("s_waitcnt " + " ".join(parts), "wait")
            if at < len(out) and out[at].kind == "wait" and out[at].tag == "auto":
                old = dict(re.findall(r"(\w+)\((\d+)\)", out[at].text)); new = dict(re.findall(r"(\w+)\((\d+)\)", w.text))
                for k, v in new.items(): old[k] = str(min(int(v), int(old.get(k, 99))))
                out[at].text = "s_waitcnt " + " ".join(f"{k}({v})" for k, v in old.items())
            else:
                w.tag = "auto"; out.insert(at, w)
                vm = [x + (x >= at) for x in vm]; lg = [x + (x >= at) for x in lg]
        pos = len(out); out.append(o)
        if o.waitall:
            vmdone = len(vm) - 1
            if o.waitall is True: lgdone = len(lg) - 1
        isasync = False
        if o.kind in VM: ordv[o] = len(vm); vm.append(pos); isasync = True
        elif o.kind in ("ds", "dsw"): ordl[o] = len(lg); lg.append(pos); isasync = True
        for r in o.wr:
            if isasync: regw[r] = o
            else: regw.pop(r, None)
        for r in o.lds_wr: ldsw[r] = o; ldsr[r] = []
        for r in o.lds_rd: ldsr[r].append(o)
        if o.kind == "mfma": lastm = pos; mpos.append(pos)
    return out

def states(o):
    if o.kind in ("label", "comment"): return 0
    m = re.match(r"s_nop (\d+)", o.text)
    return int(m.group(1)) + 1 if m else 1

def insert_nops(seq, log=None):
    out = []; nn = 0
    W = 14
    for o in seq:
        if o.kind in ("label", "comment"): out.append(o); continue
        need = 0; d = 0
        rd = set(o.rd); cc = set(o.c); wr = set(o.wr)
        for p in reversed(out[-40:]):
            if d >= W: break
            pw = set(p.wr); req = 0
            if p.kind == "mfma":
                if o.kind == "mfma":
                    if pw & rd: req = 8
                    if pw & cc and p.wr != o.c: req = max(req, 6)
                    if pw & wr and p.wr != o.c: req = max(req, 8)
                else:
                    if pw & (rd | wr): req = 8
                    if o.kind in VALU and set(p.c) & wr: req = max(req, 3)
            elif p.kind in VALU:
                vw = {r for r in pw if r[0] in "va" and r != "vcc"}; sw = pw - vw
                if o.kind == "mfma" and vw & (rd | cc): req = 2
                if o.kind == "perm" and vw & rd: req = 2
                if o.sub == "dpp" and vw & rd: req = 2
                if o.sub == "rfl" and vw & rd: req = max(req, 1)
                if p.kind == "trans" and o.kind in ("valu", "perm") and vw & rd: req = max(req, 1)
                if sw & rd:
                    req = max(req, 5 if o.kind in VM else (2 if o.kind in VALU else 3))
            elif p.kind == "salu":
                if "m0" in pw and o.kind == "dma": req = 1
            elif p.kind == "store":
                if set(p.rd) & wr and o.kind != "salu": req = 2
            need = max(need, req - d)
            d += states(p)
        if need > 0:
            out.append(Op(f"s_nop {need-1}", "salu", tag="hz")); nn += need
            if log is not None: log.append((need, o.text))
        out.append(o)
    return out, nn

def estimate(seq):
    tot = 0; cur = None; res = []
    def close(c):
        if c is None: return 0
        body = c["body"] + 4 * max(0, c["scal"] - 1) + c["pen"]
        return max(16, 8 + body)
    for o in seq:
        if o.kind in ("label", "comment"): continue
        if o.kind == "mfma":
            tot += close(cur); cur = dict(body=0, scal=0, pen=0, lastv=False, nv=0); continue
        if cur is None: tot += 4 * states(o); continue
        if o.kind in SCAL or o.kind == "branch":
            if cur["body"]: cur["body"] += 4 * states(o)
            else: cur["scal"] += states(o)
        else:
            cur["body"] += COST[o.kind]
            if o.kind not in VALU and cur["lastv"]: cur["pen"] += 8
            if o.kind == "valu":
                cur["nv"] += 1
                if cur["nv"] == 2: cur["pen"] += 2
            cur["lastv"] = o.kind in VALU
    return tot + close(cur)
```

```python
import sys, heapq, struct, json
from sched import *

KN = "standalone__mha_block_cached__near_ridge_kernel"
fbits = lambda x: struct.unpack("<I", struct.pack("<f", x))[0]

ACC, LS, QF, SS, PP, NM, ONES = 8, 104, 116, 164, 188, 200, 212
KA, VA, KD, VD, WOD = 216, 220, 228, 230, 244
WA = 216
VL16 = 248
WQA, XA, XD, WQD = 188, 196, 200, 204
T0 = 0
acc = lambda t, T: ACC + (t * 8 + T) * 4
sS = lambda t, kt: SS + (t * 2 + kt) * 4
sB, sH, sW, sROT = 20, 21, 22, 23
RX, RWQ, RK, RV, RWO, RWS, ROUT = 24, 28, 32, 36, 40, 44, 48
sWOI = 52
XS, WS = 56, 64
sPS = 56
sW2K, sW4K, sHQ, sJ, sKO, sVO, sWO, sXO, sTAG, sSC, sT1, sT2, sT3, sTHR = 72, 73, 74, 75, 76, 77, 78, 79, 80, 81, 82, 83, 84, 85
sOST, sF1, sF2, sPL = 86, 87, 88, 89
sCK, sOLD = 90, 96
STAMP = 100
KBASE, CBASE, VBASE, WQBASE, XBASE = 0, 65536, 98304, 40960, 90112
wqslot = lambda s: ((s + 1) % 3) * 16384
xslot = lambda n: ((n + 1) % 6) * 8192
blocks = lambda a, n: [f"L{b}" for b in range(a // 8192, (a + n - 1) // 8192 + 1)]
PART_OFF = 13 << 20
F1_OFF, F2_OFF, FX_OFF, GEN_OFF, WS_USED = 32 << 20, (32 << 20) + 0x8000, (32 << 20) + 0x10000, (32 << 20) + 0x20000, (32 << 20) + 0x21000
VXW, VF1, VFX = 253, 246, 247
sTAGL, sTAGL2, VTCH, VFXA = 3, 96, 243, 242
BOUND = 0x8000
OF = 164
STAMP_OFF = 255 << 20

def mfma(d, a_, b_, c):
    ct = "0" if c is None else rng(c[0], c[1], 4)
    return Op(f"v_mfma_f32_16x16x32_bf16 {rng(d[0], d[1], 4)}, {rng(a_[0], a_[1], 4)}, {rng(b_[0], b_[1], 4)}, {ct}", "mfma",
              rd=R(*a_, 4) + R(*b_, 4), wr=R(*d, 4), c=[] if c is None else R(*c, 4))
def V(text, wr, rd, kind="valu", **k): return Op(text, kind, rd=rd, wr=wr, **k)
def SA(text, wr, rd=(), **k): return Op(text, "salu", rd=rd, wr=list(wr) + ["scc"] if k.pop("scc", False) else wr, **k)
def srd(r): return R("s", r, 4)

class Gen:
    def __init__(s, **cfg):
        s.c = dict(sp=4, xlat=40, x345=20, kvstart=244, kvburst=4, kvgap=34, wostart=30, wogap=30, kvkeep=5, slot_att=(2, 6, 33, 37, 41, 45, 49), thr=2.0 ** 30, slow=True,
                   xpace=12, xlead=0, bpos=36, mid=100, stamps=False, local=False, dump=None, kvnt=False, attpace=1.5, npf=12,
                   wont=False, wqnt=False, lb=2, l2=0, nhead1=4, pf=True, retouch=True, pw=True, pin=True, split=True, ost='', loc=True, touch=[], asap=1, r1T=8, lf=['', '', ''], ord2=1, gA=50, gB=52, gC=72, wt=1)
        s.c.update(init=["wq0", "x0", "x1", "x2", "x3", "x4", "x5", "wq1"], kvstart=216, kvgap=30, wostart=40, wogap=24)
        s.c.update(cfg)
        if s.c.get("wt"): s.c.update(ost=" sc1", lf=[" sc1"] * 3)
    def prologue(s):
        o = []; a = o.append
        def sa(t, wr, rd=()): a(Op(t, "salu", rd=rd, wr=wr))
        def va(t, wr, rd=(), **k): a(Op(t, "valu", rd=rd, wr=wr, **k))
        sa("s_cmp_ge_u32 s2, 256", ["scc"]); a(Op("s_cbranch_scc1 L_end", "branch"))
        sa("s_load_dwordx16 s[4:19], s[0:1], 0", [])
        if s.c["stamps"]: sa(f"{s.c.get('clk', 's_memrealtime')} s[{STAMP}:{STAMP+1}]", [])
        if s.c["pf"]:
            sa("s_getpc_b64 s[24:25]", []); a(Op("L_pc:", "label"))
            sa("s_lshr_b32 s26, s2, 3", []); sa("s_lshl_b32 s26, s26, 11", [])
            va("v_lshl_add_u32 v2, v0, 6, s26", ["v2"]); va("v_min_u32 v2, L_codeend-L_pc-4, v2", ["v2"]); va("v_mov_b32 v3, s25", ["v3"])
            va("v_add_co_u32 v2, vcc, s24, v2", ["v2", "vcc"]); sa("s_nop 1", []); va("v_addc_co_u32 v3, vcc, 0, v3, vcc", ["v3", "vcc"])
            va("v_cmp_gt_u32 vcc, 32, v0", ["vcc"]); sa("s_nop 1", []); sa("s_and_saveexec_b64 s[26:27], vcc", []); a(Op("s_cbranch_execz L_nopf", "branch"))
            sa("global_load_dword v255, v[2:3], off", []); a(Op("L_nopf:", "label")); sa("s_mov_b64 exec, -1", [])
            sa("s_lshr_b32 s26, s2, 3", []); sa("s_lshl_b32 s26, s26, 11", [])
            va("v_lshrrev_b32 v2, 6, v0", ["v2"]); va("v_and_b32 v3, 3, v0", ["v3"]); va("v_lshl_add_u32 v2, v2, 2, v3", ["v2"])
            va("v_lshl_add_u32 v2, v2, 7, s26", ["v2"]); va("v_min_u32 v2, L_codeend-L_pc-4, v2", ["v2"]); va("v_mov_b32 v241, s25", ["v241"])
            va("v_add_co_u32 v240, vcc, s24, v2", ["v240", "vcc"]); sa("s_nop 1", []); va("v_addc_co_u32 v241, vcc, 0, v241, vcc", ["v241", "vcc"])
        va("v_lshrrev_b32 v1, 6, v0", ["v1"]); va("v_and_b32 v0, 63, v0", ["v0"])
        lb = s.c["lb"]
        sa(f"s_and_b32 s{sT1}, s2, 7", []); sa(f"s_lshr_b32 s{sT2}, s2, 3", [])
        va(f"v_readfirstlane_b32 s{sW}, v1", [f"s{sW}"], ["v1"], sub="rfl")
        sa(f"s_lshr_b32 s{sB}, s{sT1}, {lb}", []); sa(f"s_lshl_b32 s{sB}, s{sB}, {lb}", []); sa(f"s_and_b32 s{sT3}, s{sT2}, {(1<<lb)-1}", []); sa(f"s_add_u32 s{sB}, s{sB}, s{sT3}", [])
        sa(f"s_and_b32 s{sH}, s{sT1}, {(1<<lb)-1}", []); sa(f"s_lshl_b32 s{sH}, s{sH}, {5-lb}", []); sa(f"s_lshr_b32 s{sT2}, s{sT2}, {lb}", []); sa(f"s_add_u32 s{sH}, s{sH}, s{sT2}", [])
        sa(f"s_lshl_b32 s{sROT}, s{sT3}, {3-lb}", []); sa(f"s_lshr_b32 s{sT1}, s{sT1}, {lb}", []); sa(f"s_add_u32 s{sROT}, s{sROT}, s{sT1}", []); sa(f"s_add_u32 s{sROT}, s{sROT}, s{sH}", [])
        va("v_lshrrev_b32 v2, 4, v0", ["v2"]); va("v_and_b32 v3, 15, v0", ["v3"])
        va("v_lshrrev_b32 v4, 3, v0", ["v4"]); va("v_and_b32 v5, 7, v0", ["v5"])
        va("v_lshl_add_u32 v6, v1, 4, v2", ["v6"]); va("v_lshlrev_b32 v6, 13, v6", ["v6"])
        va("v_lshlrev_b32 v7, 1, v2", ["v7"]); va("v_xor_b32 v7, v7, v3", ["v7"]); va(f"v_lshl_add_u32 v{WQD}, v7, 4, v6", [f"v{WQD}"])
        va(f"v_add_u32 v{WQD+1}, {4*8192-1024}, v{WQD}", [f"v{WQD+1}"])
        va(f"v_xor_b32 v{WQD+2}, 128, v{WQD}", [f"v{WQD+2}"]); va(f"v_add_u32 v{WQD+2}, {2*(4*8192-1024)}, v{WQD+2}", [f"v{WQD+2}"])
        va(f"v_add_u32 v{WQD+3}, {4*8192-1024}, v{WQD+2}", [f"v{WQD+3}"])
        va("v_mul_u32_u24 v6, 48, v1", ["v6"]); va("v_add_u32 v6, v6, v4", ["v6"]); va("v_lshlrev_b32 v6, 10, v6", ["v6"])
        va("v_xor_b32 v7, v5, v2", ["v7"]); va(f"v_lshl_add_u32 v{XD}, v7, 4, v6", [f"v{XD}"])
        va(f"v_xor_b32 v{XD+1}, 64, v{XD}", [f"v{XD+1}"]); va(f"v_add_u32 v{XD+1}, {8192-1024}, v{XD+1}", [f"v{XD+1}"])
        sa(f"s_lshl_b32 s{sW2K}, s{sW}, 11", [], [f"s{sW}"]); sa(f"s_lshl_b32 s{sW4K}, s{sW}, 12", [])
        for k in range(3):
            sa(f"s_add_u32 s{sT1}, s{sROT}, {k}", []); sa(f"s_and_b32 s{sT1}, s{sT1}, 7", [])
            sa(f"s_lshl_b32 s{XS+k}, s{sT1}, 7", []); sa(f"s_lshl_b32 s{WS+k}, s{sT1}, 19", [])
        sa(f"s_lshl_b32 s{sT1}, s{sH}, 8", []); sa(f"s_mul_i32 s{sT2}, s{sB}, 196608", [])
        sa(f"s_lshl_b32 s{sT3}, s{sB}, 5", []); sa(f"s_add_u32 s{sT3}, s{sT3}, s{sH}", []); sa(f"s_lshl_b32 s{sT3}, s{sT3}, 17", [])
        for r in (RX, RWQ, RK, RV, RWO, RWS, ROUT): sa(f"s_mov_b32 s{r+3}, 0x20000", [])
        sa(f"s_mov_b32 s{RX+2}, 196608", []); sa(f"s_sub_u32 s{RWQ+2}, 0x400000, s{sT1}", [])
        sa(f"s_mov_b32 s{RK+2}, 0x20000", []); sa(f"s_mov_b32 s{RV+2}, 0x20000", [])
        a(Op("s_waitcnt lgkmcnt(0)", "wait"))
        def base(r, p, off):
            sa(f"s_add_u32 s{r}, s{p}, {off}", [f"s{r}"]); sa(f"s_addc_u32 s{r+1}, s{p+1}, 0", [f"s{r+1}"]); sa(f"s_and_b32 s{r+1}, s{r+1}, 0xffff", [f"s{r+1}"])
        base(RWQ, 10, f"s{sT1}"); base(RX, 4, f"s{sT2}"); base(RK, 6, f"s{sT3}"); base(RV, 8, f"s{sT3}")
        va("v_lshl_add_u32 v6, v1, 3, v2", ["v6"])
        va("v_and_b32 v7, 15, v6", ["v7"]); va("v_xor_b32 v7, v7, v3", ["v7"]); va("v_lshlrev_b32 v6, 8, v6", ["v6"])
        va(f"v_lshl_add_u32 v{KD}, v7, 4, v6", [f"v{KD}"]); va(f"v_xor_b32 v{KD+1}, 64, v{KD}", [f"v{KD+1}"])
        va("v_lshlrev_b32 v7, 1, v2", ["v7"]); va("v_xor_b32 v7, v7, v3", ["v7"])
        va(f"v_lshl_add_u32 v{VD}, v7, 4, v6", [f"v{VD}"]); va(f"v_xor_b32 v{VD+1}, 128, v{VD}", [f"v{VD+1}"])
        return o
    def prologue2(s):
        o = []; a = o.append
        def sa(t, wr=(), rd=()): a(Op(t, "salu", rd=rd, wr=wr))
        def va(t, wr, rd=(), **k): a(Op(t, "valu", rd=rd, wr=wr, **k))
        def base(r, p, off):
            sa(f"s_add_u32 s{r}, s{p}, {off}"); sa(f"s_addc_u32 s{r+1}, s{p+1}, 0"); sa(f"s_and_b32 s{r+1}, s{r+1}, 0xffff")
        sa(f"s_mov_b32 s{sT1}, {GEN_OFF}"); sa(f"s_load_dword s{sTAG}, s[18:19], s{sT1}")
        for k in range(3, 8):
            sa(f"s_add_u32 s{sT1}, s{sROT}, {k}"); sa(f"s_and_b32 s{sT1}, s{sT1}, 7")
            sa(f"s_lshl_b32 s{XS+k}, s{sT1}, 7"); sa(f"s_lshl_b32 s{WS+k}, s{sT1}, 19")
        sa(f"s_lshr_b32 s{sHQ}, s{sH}, 2"); sa(f"s_and_b32 s{sJ}, s{sH}, 3")
        sa(f"s_lshl_b32 s{sT1}, s{sHQ}, 19"); sa(f"s_lshl_b32 s{sT2}, s{sJ}, 8"); sa(f"s_add_u32 s{sT1}, s{sT1}, s{sT2}")
        base(RWO, 12, f"s{sT1}"); sa(f"s_sub_u32 s{RWO+2}, 0x400000, s{sT1}")
        sa(f"s_mul_i32 s{sT3}, s{sB}, {192*1024}"); sa(f"s_add_u32 s{sT3}, s{sT3}, s{sT2}"); sa(f"s_lshl_b32 s{sT1}, s{sHQ}, 5"); sa(f"s_add_u32 s{sT3}, s{sT3}, s{sT1}")
        base(ROUT, 14, f"s{sT3}"); sa(f"s_sub_u32 s{ROUT+2}, {8*192*1024}, s{sT3}")
        base(RWS, 18, 0); sa(f"s_mov_b32 s{RWS+2}, {WS_USED}")
        sa(f"s_lshl_b32 s1, s{sB}, 2"); sa(f"s_add_u32 s1, s1, s{sW}"); sa("s_lshl_b32 s1, s1, 5")
        for i in range(4):
            sa(f"s_xor_b32 s{sT1}, s{sH}, {i}"); sa(f"s_add_u32 s{sT2}, s1, s{sT1}"); sa(f"s_mul_i32 s{sOLD+i if i else sOST}, s{sT2}, 12288")
            sa(f"s_and_b32 s{sT1}, s{sT1}, 3"); sa(f"s_lshl_b32 s{sWOI+i}, s{sT1}, 17")
        sa(f"s_lshl_b32 s{sF1}, s{sB}, 3"); sa(f"s_add_u32 s{sF1}, s{sF1}, s{sHQ}"); sa(f"s_lshl_b32 s{sF1}, s{sF1}, 2")
        sa(f"s_add_u32 s{sPL}, s{sF1}, s{sJ}"); sa(f"s_lshl_b32 s{sPL}, s{sPL}, 2"); sa(f"s_add_u32 s{sPL}, s{sPL}, s{sW}"); sa(f"s_mul_i32 s{sPL}, s{sPL}, 10752"); sa(f"s_add_u32 s{sPL}, s{sPL}, {PART_OFF}")
        sa(f"s_add_u32 s{sF1}, s{sF1}, s{sW}"); sa(f"s_lshl_b32 s{sF1}, s{sF1}, 7"); sa(f"s_add_u32 s{sF1}, s{sF1}, {F1_OFF}")
        sa(f"s_lshl_b32 s{sF2}, s{sB}, 2"); sa(f"s_add_u32 s{sF2}, s{sF2}, s{sJ}"); sa(f"s_lshl_b32 s{sF2}, s{sF2}, 2"); sa(f"s_add_u32 s{sF2}, s{sF2}, s{sW}")
        sa(f"s_lshl_b32 s{sF2}, s{sF2}, 7"); sa(f"s_add_u32 s{sF2}, s{sF2}, {F2_OFF}")
        sa(f"s_mov_b32 s{sTHR}, {hex(fbits(s.c['thr']))}")
        sa(f"s_mov_b32 s{sSC}, {hex(fbits(1.4426950408889634 * 128 ** -0.5))}")
        va("v_bfe_u32 v6, v0, 2, 2", ["v6"]); va("v_and_b32 v7, 3, v0", ["v7"]); va("v_lshlrev_b32 v7, 3, v7", ["v7"])
        va(f"v_lshlrev_b32 v{VL16}, 4, v0", [f"v{VL16}"])
        t = 249; u = 250
        va(f"v_and_b32 v{t}, 1, v2", [f"v{t}"]); va(f"v_lshl_add_u32 v{t}, v{t}, 2, v6", [f"v{t}"])
        va(f"v_lshl_add_u32 v{t}, v{t}, 5, v7", [f"v{t}"])
        va(f"v_lshl_add_u32 v{u}, v2, 3, v6", [f"v{u}"]); va(f"v_lshl_add_u32 v{WQA}, v{u}, 8, v{t}", [f"v{WQA}"])
        va(f"v_add_u32 v{WQA}, {WQBASE}, v{WQA}", [f"v{WQA}"])
        va(f"v_lshl_add_u32 v{u}, v2, 2, v6", [f"v{u}"]); va(f"v_lshl_add_u32 v{VA}, v{u}, 8, v{t}", [f"v{VA}"])
        va(f"v_add_u32 v{VA}, {VBASE}, v{VA}", [f"v{VA}"])
        for T in range(1, 8):
            va(f"v_xor_b32 v{WQA+T}, {T*32}, v{WQA}", [f"v{WQA+T}"]); va(f"v_xor_b32 v{VA+T}, {T*32}, v{VA}", [f"v{VA+T}"])
        va(f"v_lshl_add_u32 v{t}, v1, 3, v2", [f"v{t}"]); va(f"v_lshlrev_b32 v{t}, 10, v{t}", [f"v{t}"])
        va(f"v_lshlrev_b32 v{u}, 1, v2", [f"v{u}"]); va(f"v_xor_b32 v{u}, v{u}, v3", [f"v{u}"]); va(f"v_lshl_add_u32 v{WOD}, v{u}, 4, v{t}", [f"v{WOD}"])
        va(f"v_xor_b32 v{WOD+1}, 128, v{WOD}", [f"v{WOD+1}"]); va(f"v_add_u32 v{WOD+1}, {4096-1024}, v{WOD+1}", [f"v{WOD+1}"])
        va(f"v_and_b32 v{VTCH}, 31, v0", [f"v{VTCH}"]); va(f"v_lshlrev_b32 v{VTCH}, 7, v{VTCH}", [f"v{VTCH}"])
        va(f"v_lshrrev_b32 v{t}, 1, v3", [f"v{t}"]); va(f"v_xor_b32 v{t}, v{t}, v2", [f"v{t}"]); va(f"v_lshlrev_b32 v{t}, 4, v{t}", [f"v{t}"])
        va(f"v_lshl_add_u32 v{t}, v3, 7, v{t}", [f"v{t}"]); va(f"v_lshl_add_u32 v{XA}, v1, 11, v{t}", [f"v{XA}"])
        va(f"v_add_u32 v{XA}, {XBASE}, v{XA}", [f"v{XA}"]); va(f"v_xor_b32 v{XA+1}, 64, v{XA}", [f"v{XA+1}"])
        va(f"v_and_b32 v{t}, 1, v2", [f"v{t}"]); va(f"v_lshrrev_b32 v{u}, 1, v2", [f"v{u}"]); va(f"v_lshl_add_u32 v{t}, v{t}, 1, v{u}", [f"v{t}"])
        va(f"v_xor_b32 v{t}, v{t}, v3", [f"v{t}"]); va(f"v_lshlrev_b32 v{t}, 4, v{t}", [f"v{t}"]); va(f"v_lshl_add_u32 v{KA}, v3, 8, v{t}", [f"v{KA}"])
        for d in range(1, 4): va(f"v_xor_b32 v{KA+d}, {d*64}, v{KA}", [f"v{KA+d}"])
        for i in range(4): va(f"v_mov_b32 v{ONES+i}, 0x3f803f80", [f"v{ONES+i}"])
        va("v_mul_u32_u24 v251, 48, v1", ["v251"]); va("v_add_u32 v251, v251, v3", ["v251"]); va("v_lshlrev_b32 v251, 10, v251", ["v251"]); va("v_lshl_add_u32 v251, v2, 3, v251", ["v251"])
        a(Op("s_waitcnt lgkmcnt(0)", "wait"))
        sa(f"s_add_u32 s{sTAG}, s{sTAG}, 1")
        sa(f"s_getreg_b32 s{sT1}, hwreg(HW_REG_XCC_ID, 0, 4)"); sa(f"s_add_u32 s{sT1}, s{sT1}, 1"); sa(f"s_lshl_b32 s{sT1}, s{sT1}, 24"); sa(f"s_add_u32 s0, s{sT1}, s{sTAG}")
        va(f"v_mov_b32 v{VXW}, s0", [f"v{VXW}"]); va(f"v_lshrrev_b32 v{VF1}, 1, v7", [f"v{VF1}"]); va(f"v_add_u32 v{VF1}, s{sF1}, v{VF1}", [f"v{VF1}"])
        sa(f"s_lshl_b32 s{sT1}, s{sJ}, 2"); sa(f"s_add_u32 s1, s{sT1}, s{sF1}"); sa(f"s_lshl_b32 s{sT2}, s{sHQ}, 2"); sa(f"s_add_u32 s{sT2}, s{sT2}, s{sF2}")
        va(f"v_mov_b32 v{t}, s1", [f"v{t}"]); sa(f"s_mov_b32 s{sT1}, {FX_OFF - F1_OFF}"); va(f"v_writelane_b32 v{t}, s{sT2}, 1", [f"v{t}"])
        sa("s_mov_b64 exec, 3"); a(Op(f"buffer_store_dword v{VXW}, v{t}, s[{RWS}:{RWS+3}], s{sT1} offen sc1", "store", rd=[f"v{t}"])); sa("s_mov_b64 exec, -1")
        va(f"v_lshl_add_u32 v{u}, v5, 2, s{sF2}", [f"v{u}"]); va("v_cmp_eq_u32 vcc, 1, v4", ["vcc"]); sa("s_nop 1"); va(f"v_cndmask_b32 v{VFXA}, v{VF1}, v{u}, vcc", [f"v{VFXA}"])
        return o
    def dma(s, S, m0base, ldsaddr, soff_ops, sreg, rsrc, voffs, nt, lds, after=(), earliest=None):
        ops = []
        E = earliest if isinstance(earliest, (list, tuple)) else [earliest] * len(voffs)
        e0 = E[0]
        m = Op(f"s_add_u32 m0, s{m0base}, {ldsaddr}", "salu", wr=["m0"], earliest=None if e0 is None else e0 - 5, latest=None if e0 is None else e0 - 1)
        if e0 is None: S.append(m)
        for t_, wr in soff_ops: S.append(Op(t_, "salu", wr=wr, earliest=None if e0 is None else e0 - 6, latest=None if e0 is None else e0 - 2))
        if e0 is not None: S.append(m)
        for i, v in enumerate(voffs):
            off = f" offset:{1024*i}" if i else ""
            d = Op(f"buffer_load_dwordx4 v{v}, s[{rsrc}:{rsrc+3}], s{sreg} offen{off}{' nt' if nt else ''} lds", "dma",
                   rd=["m0", f"s{sreg}", f"v{v}"], lds_wr=lds, after=after, earliest=E[i], latest=E[i] if isinstance(earliest, (list, tuple)) else None, chain="vm")
            S.append(d); ops.append(d)
        return ops
    def dK(s, S, j, **k): return s.dma(S, sW2K, s.blk[f'k{j}'] * 8192, [(f"s_mov_b32 s{sKO}, {j*8192}", [f"s{sKO}"])], sKO, RK, [KD, KD+1], s.c["kvnt"], [], **k)
    def dV(s, S, j, **k): return s.dma(S, sW2K, s.blk[f'v{j}'] * 8192, [(f"s_mov_b32 s{sVO}, {j*8192}", [f"s{sVO}"])], sVO, RV, [VD, VD+1], s.c["kvnt"], [], **k)
    def dWQ(s, S, st, **k): return s.dma(S, sW4K, WQBASE + wqslot(st), [], WS + st, RWQ, [WQD + i for i in range(4)], s.c["wqnt"], [], **k)
    def dX(s, S, n, **k):
        st, t = divmod(n, 3)
        return s.dma(S, sW2K, XBASE + xslot(n), [(f"s_add_u32 s{sXO}, s{XS+st}, {t*16384}", [f"s{sXO}"])], sXO, RX, [XD, XD+1], False, [f"X{(n+1)%6}"], **k)
    def dWO(s, S, kk, **k):
        return s.dma(S, sW2K, s.blk[f"o{kk}"] * 8192, [(f"s_add_u32 s{sWO}, s{sWOI + kk//4}, {(kk%4)*32768}", [f"s{sWO}"])], sWO, RWO, [WOD, WOD+1], s.c["wont"], [], **k)
    def oepi(s, t, S, check=True):
        st_flag = s.c["ost"]
        l = f"v{LS+4*t}"; rc = f"v{LS+4*t+1}"
        S.append(V(f"v_rcp_f32 {rc}, {l}", [rc], [l], kind="trans"))
        if check: S.append(V(f"v_cmp_nge_f32 s[{sCK+2*t}:{sCK+2*t+1}], s{sTHR}, {l}", [f"s{sCK+2*t}", f"s{sCK+2*t+1}"], [l], tag="eager"))
        for sp in range(4):
            dst = OF + (t * 4 + sp) * 4
            for hlf in range(2):
                A = acc(t, 2 * sp + hlf)
                for i in range(4): S.append(V(f"v_mul_f32 v{A+i}, {rc}, v{A+i}", [f"v{A+i}"], [f"v{A+i}", rc], tag="eager"))
                for p in range(2):
                    S.append(V(f"v_cvt_pk_bf16_f32 v{dst+2*hlf+p}, v{A+2*p}, v{A+2*p+1}", [f"v{dst+2*hlf+p}"], [f"v{A+2*p}", f"v{A+2*p+1}"], tag="eager"))
            if sp == 0: S.append(Op(f"s_add_u32 s{sXO}, s{sOST}, {t*4096}", "salu", wr=[f"s{sXO}"]))
            off = f" offset:{sp*1024}" if sp else ""
            o = Op(f"buffer_store_dwordx4 {rng('v', dst, 4)}, v{VL16}, s[{RWS}:{RWS+3}], s{sXO} offen{off}{st_flag}", "store",
                   rd=R("v", dst, 4) + [f"v{VL16}", f"s{sXO}"], chain="vm", tag="asap" if s.c.get("asap") else "")
            S.append(o)
            if check: s.ostores.append(o)
        if check and t in s.c["touch"]:
            S.append(Op(f"buffer_load_dword v254, v{VTCH}, s[{RWS}:{RWS+3}], s{sXO} offen", "load", rd=[f"s{sXO}"], chain="vm", tag="asap" if s.c.get("asap") else ""))
    def stream1(s):
        c = s.c; S = []; nm = [0]; ev = []; seq = [0]
        def at(g, fn): heapq.heappush(ev, (g, seq[0], fn)); seq[0] += 1
        def M(op):
            S.append(op); nm[0] += 1
            if nm[0] - 1 in bargaps: return
            while ev and ev[0][0] <= nm[0] - 1: heapq.heappop(ev)[2]()
        XF = lambda n, ks: 64 + n * 8 + ks * 4
        WF = lambda T, ks: T * 8 + ks * 4
        D = {}
        RD = {}
        BAR = {}
        def bar(name, g, vm=(), lg=()):
            b = Op("s_barrier", "bar", earliest=g, latest=g, chain="bar"); b.need_vm = [o for n in vm for o in D[n]]; b.need_lgkm = [o for n in lg for o in RD[n]]
            S.append(b); BAR[name] = b; return b
        def xread(n, e=None):
            RD[f"x{n}"] = [Op(f"ds_read_b128 {rng('a', XF(n, ks), 4)}, v{XA+ks} offset:{xslot(n)}", "ds", rd=[f"v{XA+ks}"], wr=R("a", XF(n, ks), 4),
                              lds_rd=[f"X{(n+1)%6}"], earliest=e) for ks in range(2)]
            S.extend(RD[f"x{n}"])
        def wqread(st, T):
            for ks in range(2):
                for r in range(2):
                    o = Op(f"ds_read_b64_tr_b16 {rng('a', WF(T, ks) + 2*r, 2)}, v{WQA+T} offset:{wqslot(st) + ks*8192 + r*1024}", "ds",
                           rd=[f"v{WQA+T}"], wr=R("a", WF(T, ks) + 2*r, 2), after=[BAR[f"q{st}"]])
                    S.append(o); RD.setdefault(f"wq{st}", []).append(o)
        KF = lambda j, kt, ds: (64 if j == 0 else 0) + (kt * 4 + ds) * 4
        def pin(ops, g0, step=1):
            if g0 is None or not c["pin"]: return
            for i, o in enumerate(ops): o.earliest = o.latest = g0 + i * step
        def kread(j, b, e=None, p=None):
            RD[f"k{j}"] = [Op(f"ds_read_b128 {rng('a', KF(j, kt, ds), 4)}, v{KA+ds} offset:{s.blk[f'k{j}']*8192 + kt*4096}", "ds", rd=[f"v{KA+ds}"],
                              wr=R("a", KF(j, kt, ds), 4), after=[b], earliest=e) for kt in range(2) for ds in range(4)]
            pin(RD[f"k{j}"], p); S.extend(RD[f"k{j}"])
        def vread(j, b, p=None):
            RD[f"v{j}"] = [Op(f"ds_read_b64_tr_b16 {rng('a', 32 + T*4 + 2*r, 2)}, v{VA+T} offset:{s.blk[f'v{j}']*8192 - VBASE + r*4096}", "ds", rd=[f"v{VA+T}"],
                              wr=R("a", 32 + T*4 + 2*r, 2), after=[b]) for T in range(8) for r in range(2)]
            pin(RD[f"v{j}"], p); S.extend(RD[f"v{j}"])
        bp = c["bpos"]
        bq = lambda st: -1 if st == 0 else (st - 1) * 48 + bp
        A0 = 384
        it0 = lambda j: A0 + 24 + 51 * j
        battn = lambda j: it0(j) + 33
        NG = it0(15) + 27
        gb = lambda nme: bq(int(nme[1:])) if nme[0] == "q" else battn(int(nme[1:]))
        bars = [f"q{i}" for i in range(1, 8)] + [f"a{j}" for j in range(15)]
        init = c.get("init", ["wq0", "x0", "x1", "x2", "x3", "x4", "x5", "wq1", "k0", "k1", "v0", "wq2"])
        slots = list(range(1, it0(0) + 30, c["sp"])) + [it0(j) + o for j in range(15) for o in c["slot_att"] if it0(j) + o >= it0(0) + 30] + list(range(it0(15) + 1, NG, c["sp"]))
        slots.sort()
        xdl = lambda n: 48 * (n // 3) - 8 + 2 * (n % 3)
        xrd = {n: (-1 if n < 3 else min(c["x345"] + 2 * (n - 3), xdl(n))) for n in range(6)}
        free = {b_: (-1, None) for b_ in (0, 1, 2, 3, 4, 17, 18, 19)}
        free.update({5: (bq(6), "q6"), 6: (bq(6), "q6"), 7: (bq(7), "q7"), 8: (bq(7), "q7"), 9: (battn(0), "a0"), 10: (battn(0), "a0")})
        xfree = {}
        def xdead(n):
            nb = next(x for x in bars if gb(x) >= xrd[n] + 10); xfree[n] = nb; free[11 + (n + 1) % 6] = (gb(nb), nb)
        s.blk = {}
        kvorder = ["k0", "k1", "v0"] + [x for j in range(1, 15) for x in (f"k{j+1}", f"v{j}")] + ["v15"]
        def take(nme, g):
            cand = [b_ for b_ in (range(8) if nme[0] == "k" else range(19, 11, -1)) if b_ in free and free[b_][0] <= g]
            if not cand: return None
            b_ = cand[0]; dep = free[b_][1]; j = int(nme[1:]); s.blk[nme] = b_
            fb = max(0, j - 1) if nme[0] == "k" else j
            if fb < 15: free[b_] = (battn(fb), f"a{fb}")
            else: del free[b_]
            return (dep,)
        head = []
        for it in init:
            if it[0] in "kv": take(it, -1)
            f = {"w": s.dWQ, "x": s.dX, "k": s.dK, "v": s.dV}[it[0]]
            head.append([]); D[it] = f(head[-1], int(it.lstrip("wqxkv")))
        s.headgroups = head
        plan = []
        qwq = [st for st in range(8) if f"wq{st}" not in init]; qx = list(range(6, 24)); qkv = [x for x in kvorder if x not in init]
        qwo = list(range(16))
        forced = [tuple(x) for x in c.get("forced", [])]
        nkv = 0; lastkv = -99; lastwo = -99; i = 0
        while i < len(slots) and (qwq or qx or qkv or qwo):
            g = slots[i]; pick = None
            if forced and g >= forced[0][1]:
                nme = forced.pop(0)[0]; qkv.remove(nme); take(nme, g); pick = (nme, 2, None)
            elif qwq and bq(max(0, qwq[0] - 2)) < g: st = qwq.pop(0); pick = (f"wq{st}", 4, f"q{st-2}" if st > 2 else None)
            elif qx and xrd[qx[0] - 6] + 7 <= g:
                n = qx.pop(0); pick = (f"x{n}", 2, None); xrd[n] = min(xdl(n), slots[i + 1] + c["xlat"])
                if n >= 18: xdead(n)
            need = lambda x: battn(max(0, int(x[1:]) - (2 if x[0] == "k" else 1)))
            if pick is None and qkv and g >= c["kvstart"] and (nkv < c["kvburst"] + (g - c["kvstart"]) / c["kvgap"] or g >= need(qkv[0]) - c.get("kvlead", 170)):
                dep = take(qkv[0], g)
                if dep: pick = (qkv.pop(0), 2, dep[0]); nkv += 1; lastkv = g
            if pick is None and qwo and g >= it0(0) + c["wostart"] and i + 1 < len(slots) and g >= lastwo + c["wogap"]:
                nk = sum(x[0] == "k" for x in qkv); nv_ = sum(x[0] == "v" for x in qkv)
                for b_ in (8, 9, 10, 11, 7, 12, 6, 13, 5, 14, 4, 15, 3, 16, 2, 17, 1, 18, 0, 19):
                    if b_ not in free or free[b_][0] > g: continue
                    if not 8 <= b_ < 12:
                        left = [x for x in free if (x < 8) == (b_ < 8) and not 8 <= x < 12 and x != b_]
                        if len(left) < min(c["kvkeep"], 2 + (nk if b_ < 8 else nv_)) and (nk if b_ < 8 else nv_): continue
                    kk = qwo.pop(0); s.blk[f"o{kk}"] = b_; pick = (f"o{kk}", 2, free[b_][1]); del free[b_]; lastwo = g; break
            if pick is None: i += 1; continue
            plan.append((pick[0], slots[i:i + pick[1]], pick[2])); i += pick[1]
        assert not (qwq or qx or qkv), (qwq, qx, qkv)
        s.wo_left = qwo; s.plan = plan; s.xrd = xrd
        bar("q0", -1, vm=["wq0"])
        for n in range(3): xread(n, -1)
        for T in range(8): wqread(0, T)
        for n in range(3, 24): at(xrd[n], lambda n=n: xread(n, xrd[n]))
        for nme, gs, dep in plan:
            def f(nme=nme, gs=gs, dep=dep):
                kw = dict(after=[BAR[dep]] if dep else [], earliest=list(gs))
                n = int(nme.lstrip("wqxkvot"))
                D[nme] = {"w": s.dWQ, "x": s.dX, "k": s.dK, "v": s.dV, "o": s.dWO}[nme[0]](S, n, **kw)
            at(gs[0], f)
        for g_ in ([330] + [it0(j) + 42 for j in (2, 6, 10, 14)] if c["pf"] and c["retouch"] else []):
            at(g_, lambda g_=g_: S.append(Op("global_load_dword v255, v[240:241], off", "load", chain="vm", earliest=g_, latest=g_)))
        gx = it0(8) + 42
        def xcheck():
            S.append(Op(f"s_mov_b32 s{sXO}, {FX_OFF - F1_OFF}", "salu", wr=[f"s{sXO}"], earliest=gx - 3, latest=gx - 1))
            S.append(Op(f"buffer_load_dword v{VFX}, v{VFXA}, s[{RWS}:{RWS+3}], s{sXO} offen sc1", "load", rd=[f"s{sXO}"], wr=[f"v{VFX}"], chain="vm", earliest=gx, latest=gx))
            S.append(V(f"v_cmp_ne_u32 vcc, s0, v{VFX}", ["vcc"], [f"v{VFX}"], earliest=it0(13) + 48, latest=it0(13) + 48))
            for n_, (r_, m_) in enumerate(((sTAGL, 0xff), (sTAGL2, 0xff00))):
                S.append(Op(f"s_and_b32 s{sT1}, vcc_lo, {m_}\n    s_cselect_b32 s{r_}, s0, s{sTAG}" if c["loc"] else f"s_mov_b32 s{r_}, s0", "cbr", rd=["vcc"], earliest=it0(14) + n_, latest=it0(14) + n_))
        at(gx, xcheck)
        s.D = D
        bargaps = {gb(x) for x in bars}
        def qepi(t):
            for ds in range(4):
                for hlf in range(2):
                    A = acc(t, 2 * ds + hlf)
                    for i in range(4): S.append(V(f"v_mul_f32 v{A+i}, s{sSC}, v{A+i}", [f"v{A+i}"], [f"v{A+i}"], tag="eager"))
                    for p in range(2):
                        q = QF + (t * 4 + ds) * 4 + 2 * hlf + p
                        S.append(V(f"v_cvt_pk_bf16_f32 v{q}, v{A+2*p}, v{A+2*p+1}", [f"v{q}"], [f"v{A+2*p}", f"v{A+2*p+1}"], tag="eager"))
                q = QF + (t * 4 + ds) * 4
                for p in range(2): S.append(V(f"v_permlane16_swap_b32 v{q+p}, v{q+2+p}", [f"v{q+p}", f"v{q+2+p}"], [f"v{q+p}", f"v{q+2+p}"], kind="perm"))
        for st in range(8):
            order = [(T, t) for T in range(8) for t in range(3)] if st < 7 else [(T, t) for t in range(3) for T in range(8)]
            for k, (T, t) in enumerate(order):
                for ks in range(2):
                    M(mfma(("v", acc(t, T)), ("a", WF(T, ks)), ("a", XF(st * 3 + t, ks)), None if st == 0 and ks == 0 else ("v", acc(t, T))))
                    if st < 7 and nm[0] - 1 == bq(st + 1):
                        lg = [f"wq{st}"] + [f"x{n}" for n in xfree if xfree[n] == f"q{st+1}"]
                        bar(f"q{st+1}", bq(st + 1), vm=[f"wq{st+1}"] + (["k0", "k1", "v0"] if st == 6 else []), lg=lg)
                        while ev and ev[0][0] <= nm[0] - 1: heapq.heappop(ev)[2]()
                if st == 7 and T == 7: qepi(t)
            if st < 7:
                for T in range(8): wqread(st + 1, T)
            if st == 6: kread(0, BAR["q7"], e=7 * 48 + 8)
        kread(1, BAR["q7"]); vread(0, BAR["q7"])
        def qk(j, t):
            for kt in range(2):
                for ds in range(4):
                    cc = ("v", sS(t, kt)) if ds else (None if j == 0 else ("v", NM + 4 * t))
                    M(mfma(("v", sS(t, kt)), ("a", KF(j, kt, ds)), ("v", QF + (t * 4 + ds) * 4), cc))
        def firstmax(t):
            r = [f"v{sS(t, 0) + i}" for i in range(8)]; m, tm = f"v{2*t}", f"v{2*t+1}"
            S.append(V(f"v_max3_f32 {m}, {r[0]}, {r[1]}, {r[2]}", [m], r[0:3]))
            S.append(V(f"v_max3_f32 {m}, {m}, {r[3]}, {r[4]}", [m], [m] + r[3:5]))
            S.append(V(f"v_max3_f32 {m}, {m}, {r[5]}, {r[6]}", [m], [m] + r[5:7]))
            S.append(V(f"v_max_f32 {m}, {m}, {r[7]}", [m], [m, r[7]]))
            for sw in ("16", "32"):
                S.append(V(f"v_mov_b32 {tm}, {m}", [tm], [m]))
                S.append(V(f"v_permlane{sw}_swap_b32 {m}, {tm}", [m, tm], [m, tm], kind="perm"))
                S.append(V(f"v_max_f32 {m}, {m}, {tm}", [m], [m, tm]))
            for i in range(4): S.append(V(f"v_sub_f32 v{NM+4*t+i}, 0, {m}", [f"v{NM+4*t+i}"], [m]))
            for x in r: S.append(V(f"v_sub_f32 {x}, {x}, {m}", [x], [x, m]))
            for o in S[-22:]: o.tag = "eager"
        def softmax(j, t, pe=None, pc=None):
            E = [V(f"v_exp_f32 v{x}, v{x}", [f"v{x}"], [f"v{x}"], kind="trans") for x in range(sS(t, 0), sS(t, 0) + 8)]
            C = [V(f"v_cvt_pk_bf16_f32 v{PP+4*t+p}, v{sS(t, 0)+2*p}, v{sS(t, 0)+2*p+1}", [f"v{PP+4*t+p}"], [f"v{sS(t, 0)+2*p}", f"v{sS(t, 0)+2*p+1}"]) for p in range(4)]
            pin(E, pe)
            if isinstance(pc, tuple) and c["pin"]:
                for o, g_ in zip(C, pc): o.earliest = o.latest = g_
            else: pin(C, pc)
            if pe is None:
                for o in C: o.tag = "eager"
            S.extend(E + C)
        def pv(j, t):
            M(mfma(("v", LS + 4 * t), ("v", ONES), ("v", PP + 4 * t), ("v", LS + 4 * t) if j else None))
            for T in range(8): M(mfma(("v", acc(t, T)), ("a", 32 + T * 4), ("v", PP + 4 * t), ("v", acc(t, T)) if j else None))
        s.ostores = []
        oepi = lambda t: s.oepi(t, S)
        for t in range(3): qk(0, t); firstmax(t); softmax(0, t)
        for j in range(16):
            for t in range(3):
                if t == 2 and j < 15:
                    vm = ([f"k{j+2}"] if j < 14 else []) + [f"v{j+1}"]
                    lg = [f"k{j+1}", f"v{j}"] + (["k0", "wq7"] if j == 0 else []) + [f"x{n}" for n in xfree if xfree[n] == f"a{j}"]
                    bar(f"a{j}", battn(j), vm=vm, lg=lg)
                    while ev and ev[0][0] <= nm[0] - 1: heapq.heappop(ev)[2]()
                if j < 15: qk(j + 1, t)
                g0 = it0(j)
                if t == 2 and j < 14: kread(j + 2, BAR[f"a{j}"], p=g0 + 34)
                pv(j, t)
                if j < 15:
                    steady = j >= 1
                    if t == 0: softmax(j + 1, t, *((g0 + 8, tuple(g0 + x for x in (36, 38, 39, 40))) if steady else ()))
                    elif t == 1: softmax(j + 1, t, *((g0 + 25, tuple(g0 + x for x in (43, 44, 46, 47))) if steady and j < 14 else ((g0 + 25, None) if steady else ())))
                    else: softmax(j + 1, t, *((g0 + 51 + 16, tuple(g0 + 51 + x for x in (24, 24, 34, 35))) if j < 14 else ()))
                else: oepi(t)
            if j < 15: vread(j + 1, BAR[f"a{j}"], p=it0(j) + 43 if j < 14 else None)
        assert not ev, ev
        return S
    def stream2(s):
        c = s.c
        ring = [("a", 16 * i) for i in range(4)] + [("a", 208 + 16 * i) for i in range(3)] + [("v", QF + 16 * i) for i in range(3)]
        rp = [0]; U = {}
        OB = lambda i, t, sp: ("v", OF + (t * 4 + sp) * 4) if i == 0 else ("a", 64 + ((i - 1) * 12 + t * 4 + sp) * 4)
        def unit(S, i, T, after=()):
            p, r0 = U[i, T] = ring[rp[0] % len(ring)]; rp[0] += 1
            for sp in range(4):
                ad = s.blk[f"o{4*i+sp}"] * 8192
                for r in range(2):
                    S.append(Op(f"ds_read_b64_tr_b16 {rng(p, r0 + 4*sp + 2*r, 2)}, v{WA + 8*(ad >> 16) + T} offset:{(ad & 65535) + r*4096}", "ds",
                                rd=[f"v{WA + 8*(ad >> 16) + T}"], wr=R(p, r0 + 4*sp + 2*r, 2), after=after))
        def chain(S, i, T, t):
            p, r0 = U[i, T]
            for sp in range(4): S.append(mfma(("v", acc(t, T)), (p, r0 + 4 * sp), OB(i, t, sp), None if i == 0 and sp == 0 else ("v", acc(t, T))))
        def oload(i, t, dst, g=None, so=sXO, step=4):
            dst.append(Op(f"s_add_u32 s{so}, s{sOLD+i}, {t*4096}", "salu", wr=[f"s{so}"], earliest=None if g is None else g - 3, latest=None if g is None else g - 1))
            for sp in range(4):
                p, r = OB(i, t, sp); off = f" offset:{sp*1024}" if sp else ""; e = None if g is None else g + step * sp
                dst.append(Op(f"buffer_load_dwordx4 {rng(p, r, 4)}, v{VL16}, s[{RWS}:{RWS+3}], s{so} offen{off}{c['lf'][i-1]}", "load",
                              rd=[f"v{VL16}", f"s{so}"], wr=R(p, r, 4), chain="vm", sub=1, earliest=e, latest=e))
        pre = [Op(f"s_lshl_b32 s{sT1}, s{sHQ}, 5", "salu", wr=[f"s{sT1}"]), V(f"v_subrev_u32 v240, {VBASE}, v{VA}", ["v240"], [f"v{VA}"]),
               V(f"v_xor_b32 v240, s{sT1}, v240", ["v240"], ["v240"])]
        for wdw in range(3):
            for T in range(8):
                r = WA + 8 * wdw + T
                pre.append(V(f"v_xor_b32 v{r}, {T*32}, v240", [f"v{r}"], ["v240"]) if wdw == 0 else V(f"v_add_u32 v{r}, 65536, v{r-8}", [f"v{r}"], [f"v{r-8}"]))
        s.pre2 = pre
        R0 = []
        for T in range(8):
            unit(R0, 0, T)
            for t in range(3): chain(R0, 0, T, t)
        nT = c["r1T"]
        for T in range(nT): unit(R0, 1, T)
        for T in range(1, 8):
            R0 += [Op(f"s_xor_b32 s{sT1}, s{sHQ}, {T}", "salu", wr=[f"s{sT1}"]), Op(f"s_sub_i32 s{sT1}, s{sT1}, s{sHQ}", "salu", rd=[f"s{sT1}"], wr=[f"s{sT1}"]),
                   Op(f"s_mul_i32 s{sT1}, s{sT1}, {16*10752}", "salu", rd=[f"s{sT1}"], wr=[f"s{sT1}"]),
                   Op(f"s_add_u32 s{sT1}, s{sT1}, s{sPL}", "salu", rd=[f"s{sT1}"], wr=[f"s{sT1}"]),
                   Op(f"s_add_u32 s{sPS+T-1}, s{sT1}, {(T-1)*1536}", "salu", rd=[f"s{sT1}"], wr=[f"s{sPS+T-1}"])]
        R0.append(V(f"v_lshrrev_b32 v241, 1, v{VL16}", ["v241"], []))
        S = R0; s.retry = []
        gA, gB, gC = c["gA"], c["gB"], c["gC"]
        wt = "sc1" in c["ost"]
        assert not wt or all("sc1" in x for x in c["lf"])
        fl = Op(f"s_cmp_lg_u32 s{sTAGL}, s{sTAG}\n    s_cbranch_scc1 L_far\n    s_mov_b64 exec, 1\n    buffer_store_dword v6, v7, s[{RWS}:{RWS+3}], s1 offen\n    s_mov_b64 exec, -1\nL_farback:",
                "store", chain="vm", earliest=gA, latest=gA); fl.need_vm = list(s.ostores); S.append(fl)
        s.retry += [Op(x, "label" if x.endswith(":") else "salu") for x in
                    ("L_far:",) + (() if wt else ("buffer_wbl2 sc1", "s_waitcnt vmcnt(0)")) + ("s_mov_b64 exec, 1", f"buffer_store_dword v6, v7, s[{RWS}:{RWS+3}], s1 offen sc1", "s_mov_b64 exec, -1", "s_branch L_farback")]
        pl = f"buffer_load_dword v5, v{VF1}, s[{RWS}:{RWS+3}], 0 offen sc1"
        S.append(Op(pl, "load", wr=["v5"], chain="vm", sub=1, earliest=gB, latest=gB))
        S.append(V(f"v_cmp_ne_u32 vcc, s{sTAG if wt else sTAGL}, v5", ["vcc"], ["v5"], earliest=gC - 2, latest=gC - 2))
        go = Op("s_cbranch_vccnz L_wait1\nL_go1:", "cbr", rd=["vcc"], earliest=gC, latest=gC); S.append(go)
        s.retry += [Op(x, "label" if x.endswith(":") else "salu") for x in
                    ("L_wait1:", f"s_mov_b32 s{sT3}, 0", "L_poll1:", pl, "s_waitcnt vmcnt(0)", f"v_cmp_ne_u32 vcc, s{sTAG}, v5", f"s_add_u32 s{sT3}, s{sT3}, 1", "s_nop 2",
                     "s_cbranch_vccz L_seen1", f"s_cmp_lt_u32 s{sT3}, {BOUND}", "s_cbranch_scc1 L_poll1", "L_seen1:") + (() if wt else (f"s_cmp_eq_u32 s{sTAGL}, s{sTAG}", "s_cbranch_scc1 L_go1",
                     "buffer_inv sc1", "s_waitcnt vmcnt(0)")) + ("s_branch L_go1",)]
        seq = [(1, 0), (1, 1), (1, 2), (2, 0), (3, 0), (2, 1), (3, 1), (2, 2), (3, 2)] if not c["ord2"] else [(i, t) for i in (1, 2, 3) for t in range(3)]
        for n, (i, t) in enumerate(seq):
            n0 = len(S); nb = c.get("oburst", 0)
            if n < nb: oload(i, t, S, gC + 1, so=(sXO, sKO, sVO, sWO)[n % 4], step=0)
            else: oload(i, t, S, gC + 2 + 16 * (n - nb), so=(sXO, sKO, sVO, sWO)[n % 4])
            for o in S[n0 + 1:]: o.after = [go]
        P1 = Op("s_barrier", "bar", earliest=96 + 2, latest=96 + 2); P1.need_vm = s.wo_hi; S.append(P1)
        for t in range(3):
            for T in range(nT): chain(S, 1, T, t)
            if t == 0:
                for T in range(nT, 8): unit(S, 1, T)
            if nT == 8 and t == 2:
                for T in range(1, 5): unit(S, 2, T, [P1])
        g1 = list(range(1, 1 + (4 if c["ord2"] else 3)))
        for T in range(nT, 8):
            for t in range(3): chain(S, 1, T, t)
            if c["ord2"]: unit(S, 2, g1[T - 4], [P1])
            elif T == 4: unit(S, 2, g1[0], [P1]); unit(S, 3, g1[0], [P1])
        s.pstores = []
        def publish(T, t):
            A = acc(0, T) if t < 2 else acc(2, T); src = acc(t, T); d = A + (2 if t == 1 else 0)
            for p in range(2): S.append(V(f"v_cvt_pk_bf16_f32 v{d+p}, v{src+2*p}, v{src+2*p+1}", [f"v{d+p}"], [f"v{src+2*p}", f"v{src+2*p+1}"]))
            if t == 1: o = Op(f"buffer_store_dwordx4 {rng('v', A, 4)}, v{VL16}, s[{RWS}:{RWS+3}], s{sPS+T-1} offen sc1", "store", rd=R("v", A, 4), chain="vm")
            elif t == 2: o = Op(f"buffer_store_dwordx2 {rng('v', A, 2)}, v241, s[{RWS}:{RWS+3}], s{sPS+T-1} offen offset:1024 sc1", "store", rd=R("v", A, 2), chain="vm")
            else: return
            S.append(o); s.pstores.append(o)
        if c["ord2"]:
            for t in range(3):
                for T in g1: chain(S, 2, T, t)
                if t == 0:
                    for T in g1: unit(S, 3, T, [P1])
            for t in range(3):
                for T in g1: chain(S, 3, T, t); publish(T, t)
        else:
            for T in g1[1:]: unit(S, 2, T, [P1]); unit(S, 3, T, [P1])
            for t in range(3):
                for T in g1:
                    chain(S, 2, T, t); chain(S, 3, T, t); publish(T, t)
        rest = [T for T in range(1, 8) if T not in g1] + [0]
        for T in rest:
            unit(S, 2, T, [P1]); unit(S, 3, T, [P1])
            for t in range(3):
                chain(S, 2, T, t); chain(S, 3, T, t)
                if T: publish(T, t)
        F = []
        for T in range(1, 8):
            r = OF + (T - 1) * 6 + ((T - 1) & 1) * 0
            RA_, RB_ = OF + (T - 1) * 4, OF + 28 + (T - 1) * 2
            so = f"s{sPL}"
            F.append(Op(f"s_add_u32 s{sXO}, s{sPL}, {(T-1)*1536}", "salu", wr=[f"s{sXO}"]))
            F.append(Op(f"buffer_load_dwordx4 {rng('v', RA_, 4)}, v{VL16}, s[{RWS}:{RWS+3}], s{sXO} offen sc1", "load", rd=[f"s{sXO}"], wr=R("v", RA_, 4)))
            F.append(Op(f"buffer_load_dwordx2 {rng('v', RB_, 2)}, v241, s[{RWS}:{RWS+3}], s{sXO} offen offset:1024 sc1", "load", rd=[f"s{sXO}"], wr=R("v", RB_, 2)))
        tmp = QF
        for T in range(1, 8):
            RA_, RB_ = OF + (T - 1) * 4, OF + 28 + (T - 1) * 2
            for t in range(3):
                for p in range(2):
                    src = RA_ + 2 * t + p if t < 2 else RB_ + p; A = acc(t, 0) + 2 * p; x = tmp + ((T * 6 + t * 2 + p) % 8) * 2
                    F.append(V(f"v_lshlrev_b32 v{x}, 16, v{src}", [f"v{x}"], [f"v{src}"]))
                    F.append(V(f"v_and_b32 v{x+1}, 0xffff0000, v{src}", [f"v{x+1}"], [f"v{src}"]))
                    F.append(V(f"v_pk_add_f32 v[{A}:{A+1}], v[{A}:{A+1}], v[{x}:{x+1}]", R("v", A, 2), R("v", A, 2) + R("v", x, 2)))
        for t in range(3):
            A = acc(t, 0)
            for p in range(2): F.append(V(f"v_cvt_pk_bf16_f32 v{A+p}, v{A+2*p}, v{A+2*p+1}", [f"v{A+p}"], [f"v{A+2*p}", f"v{A+2*p+1}"]))
            F.append(Op(f"s_mov_b32 s{sKO}, {t*16384}", "salu", wr=[f"s{sKO}"]))
            F.append(Op(f"buffer_store_dwordx2 {rng('v', A, 2)}, v251, s[{ROUT}:{ROUT+3}], s{sKO} offen", "store", rd=R("v", A, 2) + ["v251", f"s{sKO}"]))
        s.fin2 = F
        return S
    def slowpath(s):
        L = []; a = L.append
        raw = lambda t, kind="salu", **k: a(Op(t, kind, **k))
        va = lambda t, wr, rd=(), **k: a(V(t, wr, rd, **k))
        a(Op("L_slow:", "label")); w = Op("s_waitcnt vmcnt(0) lgkmcnt(0)", "wait"); w.waitall = True; a(w)
        ln, g, i_ = "v0", "v1", "v2"
        va(f"v_lshrrev_b32 v0, 4, v{VL16}", [ln]); va("v_lshrrev_b32 v1, 4, v0", [g]); va("v_and_b32 v2, 15, v0", [i_])
        va("v_and_b32 v3, 1, v1", ["v3"]); va("v_lshrrev_b32 v4, 1, v1", ["v4"]); va("v_lshl_add_u32 v3, v3, 1, v4", ["v3"])
        va("v_lshlrev_b32 v3, 4, v3", ["v3"]); va(f"v_lshl_add_u32 v{KA}, v2, 8, v3", [f"v{KA}"])
        va("v_lshlrev_b32 v3, 1, v1", ["v3"]); va("v_xor_b32 v3, v3, v2", ["v3"]); va("v_lshlrev_b32 v3, 4, v3", ["v3"])
        va(f"v_lshl_add_u32 v{VD}, v1, 8, v3", [f"v{VD}"]); va(f"v_xor_b32 v{VD+1}, 128, v{VD}", [f"v{VD+1}"])
        sp_ = s.spare
        raw(f"s_mov_b32 s{sVO}, {sp_[0]*8192}")
        for w_ in range(1, 4): raw(f"s_cmp_eq_u32 s{sW}, {w_}"); raw(f"s_cselect_b32 s{sVO}, {sp_[w_]*8192}, s{sVO}")
        raw(f"s_sub_u32 s{sT3}, s{sVO}, {VBASE}")
        for T in range(8): va(f"v_add_u32 v{232+T}, s{sT3}, v{VA+T}", [f"v{232+T}"])
        def kload():
            raw(f"s_add_u32 s{sT2}, s{sT1}, 4096", wr=[f"s{sT2}"])
            for kt in range(2):
                for ds in range(4):
                    a(Op(f"buffer_load_dwordx4 {rng('a', (kt*4+ds)*4, 4)}, v{KA}, s[{RK}:{RK+3}], s{(sT1, sT2)[kt]} offen offset:{ds*64}", "load", wr=R("a", (kt*4+ds)*4, 4)))
        def qk(cneg):
            for t in range(3):
                for kt in range(2):
                    for ds in range(4):
                        a(mfma(("v", sS(t, kt)), ("a", (kt*4+ds)*4), ("v", QF + (t*4+ds)*4), ("v", sS(t, kt)) if ds else (("v", NM + 4*t) if cneg else None)))
        def loop(lbl):
            raw("s_nop 7"); raw(f"s_add_u32 s{sT1}, s{sT1}, 8192"); raw(f"s_cmp_lt_u32 s{sT1}, 0x20000"); a(Op(f"s_cbranch_scc1 {lbl}", "branch"))
        for t in range(3): va(f"v_mov_b32 v{t}, 0xff800000", [f"v{t}"])
        raw(f"s_mov_b32 s{sT1}, 0"); a(Op("L_s1:", "label")); kload(); qk(False)
        for t in range(3):
            r = [f"v{sS(t, 0)+i}" for i in range(8)]
            for p in range(4): va(f"v_max3_f32 v{t}, v{t}, {r[2*p]}, {r[2*p+1]}", [f"v{t}"], [f"v{t}", r[2*p], r[2*p+1]])
        loop("L_s1")
        for t in range(3):
            m, tm = f"v{t}", "v3"
            for sw in ("16", "32"):
                va(f"v_mov_b32 {tm}, {m}", [tm], [m]); va(f"v_permlane{sw}_swap_b32 {m}, {tm}", [m, tm], [m, tm], kind="perm"); va(f"v_max_f32 {m}, {m}, {tm}", [m], [m, tm])
            for i in range(4): va(f"v_sub_f32 v{NM+4*t+i}, 0, {m}", [f"v{NM+4*t+i}"], [m])
        for r in range(ACC, LS + 12): va(f"v_mov_b32 v{r}, 0", [f"v{r}"])
        raw(f"s_mov_b32 s{sT1}, 0"); a(Op("L_s2:", "label")); kload()
        for hf in range(2):
            raw(f"s_add_u32 m0, s{sVO}, {hf*4096}", wr=["m0"])
            for i in range(4):
                a(Op(f"buffer_load_dwordx4 v{VD+(i&1)}, s[{RV}:{RV+3}], s{(sT1, sT2)[hf]} offen offset:{i*1024} lds", "dma", rd=["m0"], lds_wr=["SV"]))
        qk(True)
        for t in range(3):
            for i in range(8): va(f"v_exp_f32 v{sS(t,0)+i}, v{sS(t,0)+i}", [f"v{sS(t,0)+i}"], [f"v{sS(t,0)+i}"], kind="trans")
            for p in range(4): va(f"v_cvt_pk_bf16_f32 v{PP+4*t+p}, v{sS(t,0)+2*p}, v{sS(t,0)+2*p+1}", [f"v{PP+4*t+p}"], [f"v{sS(t,0)+2*p}", f"v{sS(t,0)+2*p+1}"])
        for T in range(8):
            for r in range(2):
                a(Op(f"ds_read_b64_tr_b16 {rng('a', 32+T*4+2*r, 2)}, v{232+T} offset:{r*4096}", "ds", rd=[f"v{232+T}"], wr=R("a", 32+T*4+2*r, 2), lds_rd=["SV"]))
        for t in range(3):
            a(mfma(("v", LS+4*t), ("v", ONES), ("v", PP+4*t), ("v", LS+4*t)))
            for T in range(8): a(mfma(("v", acc(t, T)), ("a", 32+T*4), ("v", PP+4*t), ("v", acc(t, T))))
        loop("L_s2")
        for t in range(3): s.oepi(t, L, check=False)
        a(Op("s_waitcnt vmcnt(0) lgkmcnt(0)", "wait")); a(Op("s_branch L_back", "branch"))
        L = insert_waits(L, hoist=False); L, _ = insert_nops(L)
        return L
    def stamp(s, name):
        if not s.c["stamps"]: return []
        k = len(s.names); s.names.append(name)
        return [Op(f"v_writelane_b32 v252, s{STAMP}, {k-1}", "valu", tag="st"), Op(f"{s.c.get('clk', 's_memrealtime')} s[{STAMP}:{STAMP+1}]", "salu", tag="st")]
    def build(s):
        c = s.c
        S1 = s.stream1(); P1 = schedule(S1)
        used = {s.blk[f"o{kk}"] for kk in range(16) if f"o{kk}" in s.blk}
        fr = [b_ for b_ in range(20) if b_ not in used]
        late = []
        for kk in s.wo_left: s.blk[f"o{kk}"] = fr.pop(); late.append(kk)
        assert all(kk >= 8 for kk in late)
        s.spare = fr[:4]
        SLOW = s.slowpath() if c["slow"] else []
        LATE = []
        for kk in late: s.D[f"o{kk}"] = s.dWO(LATE, kk)
        s.wo_hi = [o for kk in range(8, 16) for o in s.D[f"o{kk}"]]
        S2 = s.stream2(); P2 = schedule(S2, mlat=7)
        s.names = ["start"]
        hd = s.headgroups
        L = s.prologue() + sum(hd[:c["nhead1"]], []) + s.stamp("iss1") + s.prologue2() + s.stamp("pro2") + sum(hd[c["nhead1"]:], []) + s.stamp("issued") + [Op("@WARM", "label")]
        n = 0; nb = 0
        for o in P1:
            if o.kind == "mfma":
                if n == 384: L += s.stamp("att0")
                n += 1
                if n == 384 + 24 + 15 * 51 + 27: L.append(o); L += s.stamp("lastpv"); continue
            L.append(o)
            if o.kind == "bar":
                if not c.get("st2"): L += s.stamp(f"b{nb}")
                nb += 1
        L += s.stamp("epi")
        raw = lambda t, kind="salu", **k: Op(t, kind, **k)
        bb = Op("s_barrier", "bar"); bb.need_vm = [o for kk in range(8) for o in s.D[f"o{kk}"]]
        L += [raw("s_waitcnt lgkmcnt(0)", "wait"), bb]
        if c["slow"]:
            L += [Op(f"s_or_b64 s[{sCK}:{sCK+1}], s[{sCK}:{sCK+1}], s[{sCK+2}:{sCK+3}]", "salu", rd=R("s", sCK, 4)),
                  Op(f"s_or_b64 s[{sCK}:{sCK+1}], s[{sCK}:{sCK+1}], s[{sCK+4}:{sCK+5}]", "salu", rd=R("s", sCK, 6)),
                  Op("s_cbranch_scc1 L_slow", "branch"), Op("L_back:", "label")]
        L += LATE
        def signal_and_wait(name, stores, sline, sidx, n):
            fl = Op("s_nop 0", "salu"); fl.need_vm = list(stores)
            o = [raw(f"s_lshl_b32 s{sT1}, s{sidx}, 2"), V(f"v_mov_b32 v7, s{sT1}", ["v7"], []), fl, raw("s_mov_b64 exec, 1"),
                 Op(f"s_cmp_lg_u32 s{sTAGL2}, s{sTAG}\n    s_cbranch_scc1 L_far2\n    buffer_store_dword v6, v7, s[{RWS}:{RWS+3}], s{sline} offen\nL_farback2:", "store", rd=["v6", "v7"])]
            s.retry += [Op("L_far2:", "label"), raw(f"buffer_store_dword v6, v7, s[{RWS}:{RWS+3}], s{sline} offen sc1"), raw("s_branch L_farback2")]
            o += s.stamp("fl" + name)
            o += [raw(f"s_mov_b64 exec, {(1 << n) - 1}"), raw(f"s_mov_b32 s{sT1}, 0"), Op(f"L_poll{name}:", "label"),
                  Op(f"buffer_load_dword v5, v4, s[{RWS}:{RWS+3}], s{sline} offen sc1", "load", rd=["v4"], wr=["v5"])]
            w = raw("s_waitcnt vmcnt(0)", "wait"); w.waitall = "vm"
            o += [w, V(f"v_cmp_ne_u32 vcc, s{sTAG}, v5", ["vcc"], []), raw(f"s_add_u32 s{sT1}, s{sT1}, 1"), raw("s_nop 2"),
                  Op(f"s_cbranch_vccz L_go{name}", "branch"), raw(f"s_cmp_lt_u32 s{sT1}, {BOUND}"), Op(f"s_cbranch_scc1 L_poll{name}", "branch"),
                  Op(f"L_go{name}:", "label"), raw("s_mov_b64 exec, -1")]
            return o + s.stamp("go" + name)
        L += s.pre2 + [V(f"v_mov_b32 v6, s{sTAG}", ["v6"], []), V(f"v_lshrrev_b32 v4, 2, v{VL16}", ["v4"], [f"v{VL16}"])]
        L += [V("v_mov_b32 v7, 0", ["v7"], [])]
        n = 0
        for o in P2:
            if o.kind == "mfma":
                if (n in c["st2"] if c.get("st2") else n % 48 == 0): L += s.stamp(f"h{n}" if c.get("st2") else f"h{n//48}")
                n += 1
            L.append(o)
        L += s.stamp("p2end") + signal_and_wait("2", s.pstores, sF2, sHQ, 8) + s.fin2
        L += [raw(f"s_or_b32 s{sT1}, s2, s{sW}"), raw(f"s_cmp_lg_u32 s{sT1}, 0"), Op("s_cbranch_scc1 L_fin", "branch"),
              V(f"v_lshlrev_b32 v0, 5, v{VL16}", ["v0"], []), V("v_mov_b32 v7, 0", ["v7"], []), raw(f"s_mov_b32 s{sT2}, {FX_OFF}"),
              raw(f"s_mov_b32 s{sT1}, 0"), Op("L_pollg:", "label"),
              Op(f"buffer_load_dwordx4 v[60:63], v0, s[{RWS}:{RWS+3}], s{sT2} offen sc1", "load", rd=["v0"], wr=R("v", 60, 4))]
        w = raw("s_waitcnt vmcnt(0)", "wait"); w.waitall = True
        L += [w] + [V(f"v_xor_b32 v{60+i}, s{sTAG}, v{60+i}", [f"v{60+i}"], []) for i in range(4)]
        L += [V("v_or3_b32 v60, v60, v61, v62", ["v60"], []), V("v_or_b32 v60, v60, v63", ["v60"], []), V("v_and_b32 v60, 0xffffff, v60", ["v60"], []), V("v_cmp_ne_u32 vcc, 0, v60", ["vcc"], []),
              raw(f"s_add_u32 s{sT1}, s{sT1}, 1"), raw("s_nop 2"), Op("s_cbranch_vccz L_gog", "branch"), raw(f"s_cmp_lt_u32 s{sT1}, {BOUND}"), Op("s_cbranch_scc1 L_pollg", "branch"),
              Op("L_gog:", "label"), raw(f"s_mov_b32 s{sT1}, {GEN_OFF}"), raw("s_mov_b64 exec, 1"),
              Op(f"buffer_store_dword v6, v7, s[{RWS}:{RWS+3}], s{sT1} offen sc1", "store", rd=["v6", "v7"]), raw("s_mov_b64 exec, -1"), Op("L_fin:", "label")]
        if c["stamps"]:
            L += [raw("s_waitcnt vmcnt(0)", "wait")] + s.stamp("end") + [raw("s_waitcnt lgkmcnt(0)", "wait")] + s.stamp("x")[:1]
            s.names.pop()
            L += [raw(f"s_cmp_lg_u32 s{sW}, {c.get('stw', 0)}"), Op("s_cbranch_scc1 L_end", "branch"),
                  raw(f"s_mov_b32 s{RWS+2}, 0x10000000"),
                  raw(f"s_lshl_b32 s{sT1}, s2, 8"), raw(f"s_add_u32 s{sT1}, s{sT1}, {STAMP_OFF}"),
                  Op(f"buffer_store_dword v252, v4, s[{RWS}:{RWS+3}], s{sT1} offen", "store", rd=["v252"])]
        L += [Op("L_end:", "label"), Op("s_endpgm", "branch"), Op("L_codeend:", "label")]
        L = insert_waits(L)
        log = []; L, nn = insert_nops(L, log)
        s.nmain = len(L); L += s.retry + SLOW
        s.log = log; s.L = L
        return L
    def pagewarm(s, L):
        import subprocess, re
        iw = next(i for i, o in enumerate(L) if o.text == "@WARM")
        if not s.c["pw"]: return L[:iw] + L[iw + 1:]
        body = L[iw + 1:s.nmain]
        src = '.amdgcn_target "amdgcn-amd-amdhsa--gfx950"\n.text\n' + "".join(o.text + "\n" for o in L if o.text != "@WARM")
        open("_sz.s", "w").write(src)
        subprocess.run(["clang", "-x", "assembler", "-target", "amdgcn-amd-amdhsa", "-mcpu=gfx950", "-c", "_sz.s", "-o", "_sz.o"], check=True)
        d = subprocess.run(["llvm-objdump", "-d", "--mcpu=gfx950", "_sz.o"], capture_output=True, text=True).stdout
        sz = [4 * len(m.group(1).split()) for m in re.finditer(r"// [0-9A-F]{12}: ([0-9A-F ]+)", d)]
        size = {}; p_ = 0
        for o in L:
            if o.kind == "label": continue
            n_ = sum(1 for x in o.text.split("\n") if not x.endswith(":")); size[o] = sum(sz[p_:p_ + n_]); p_ += n_
        assert p_ == len(sz), (p_, len(sz))
        out = []; pos = 0; npg = 0
        for i, o in enumerate(body):
            if pos >= 4096 * npg:
                ahead = pos; ok = out and out[-1].kind == "mfma"
                if not ok:
                    p = pos; later = False
                    for q in body[i:i + 16]:
                        p += size.get(q, 0)
                        if p > 4096 * npg + 56: break
                        if q.kind == "mfma": later = True; break
                    ok = not later
                if ok: out += [Op(f"L_pg{npg}:", "label"), Op(f"@PG{npg}", "branch")]; npg += 1; pos += 4
            out.append(o); pos += size.get(o, 0)
        for o in out:
            if o.text.startswith("@PG"):
                n = int(o.text[3:]); o.text = f"s_cbranch_execz " + (f"L_pg{n+4}" if n + 4 < npg else "L_warmed")
        hop = [Op("s_mov_b64 exec, 0", "salu")]
        for w in range(3): hop += [Op(f"s_cmp_eq_u32 s{sW}, {w}", "salu"), Op(f"s_cbranch_scc1 L_pg{w}", "branch")]
        hop += [Op("s_branch L_pg3", "branch"), Op("L_warmed:", "label"), Op("s_mov_b64 exec, -1", "salu"), Op("s_branch L_main", "branch"),
                Op(".p2align 12", "label"), Op("L_main:", "label")]
        n0 = s.nmain; s.nmain = iw + len(hop) + len(out)
        return L[:iw] + hop + out + L[n0:]
    def text(s):
        L = s.build(); L = s.L = s.pagewarm(L)
        hdr = open("standalone__mha_block_cached__near_ridge.s.ref").read().split("; Override")[0]
        t = hdr + ("; stamps: " + " ".join(s.names) + "\n" if s.c["stamps"] else "") + "; @launch grid=(256,1,1) block=(256,1,1) lds=163840\n"
        t += f'.amdgcn_target "amdgcn-amd-amdhsa--gfx950"\n.text\n.globl {KN}\n.p2align 8\n.type {KN},@function\n{KN}:\n'
        t += "".join((o.text if o.kind == "label" else "    " + o.text) + "\n" for o in L)
        t += (f'.section .rodata,"a"\n.p2align 6\n.amdhsa_kernel {KN}\n  .amdhsa_next_free_vgpr 512\n  .amdhsa_next_free_sgpr 102\n  .amdhsa_accum_offset 256\n'
              "  .amdhsa_group_segment_fixed_size 0\n  .amdhsa_kernarg_size 64\n  .amdhsa_user_sgpr_count 2\n  .amdhsa_user_sgpr_kernarg_segment_ptr 1\n"
              "  .amdhsa_system_sgpr_workgroup_id_x 1\n.end_amdhsa_kernel\n")
        return t

def summary(g):
    L = g.L[:g.nmain]; mi = [i for i, o in enumerate(L) if o.kind == "mfma"]; n1 = 1200
    return " ".join(f"{n} {estimate(L[a:b])}" for n, a, b in (("qproj", mi[0], mi[384]), ("attn", mi[384], mi[n1-1] + 1), ("epi", mi[n1-1], mi[n1]), ("r0", mi[n1], mi[n1+95] + 1), ("r123", mi[n1+96], mi[-1] + 1), ("tail", mi[-1], len(L))))
if __name__ == "__main__":
    out = sys.argv[1]; cfg = json.loads(sys.argv[2]) if len(sys.argv) > 2 else {}
    g = Gen(**cfg); t = g.text(); open(out, "w").write(t)
    print(" ".join(f"{n}@{gs[0]}" for n, gs, d in g.plan)); print("xrd", g.xrd, "blk", g.blk, "left", g.wo_left, "spare", g.spare)
    L = g.L[:g.nmain]; mi = [i for i, o in enumerate(L) if o.kind == "mfma"]
    n1 = 384 + 24 + 15 * 51 + 27
    print("ops", len(L), "mfma", len(mi), "nops", g.log[:40], len(g.log))
    print("est cycles: qproj", estimate(L[mi[0]:mi[384]]), "attn", estimate(L[mi[384]:mi[n1 - 1] + 1]), "attn tail", estimate(L[mi[n1-1]:mi[n1]]),
          "r0", estimate(L[mi[n1]:mi[n1+95] + 1]), "r1-3", estimate(L[mi[n1+96]:mi[-1] + 1]), "tail", estimate(L[mi[-1]:]))
```

```python
import sys, heapq, struct, json
from sched import *

KN = "standalone__mha_block_cached__near_ridge_kernel"
fbits = lambda x: struct.unpack("<I", struct.pack("<f", x))[0]

ACC, LS, QF, SS, PP, NM, ONES = 8, 104, 116, 164, 188, 200, 212
KA, VA, KD, VD, WOD = 216, 220, 228, 230, 244
WA = 216
VL16 = 248
WQA, XA, XD, WQD = 188, 196, 200, 204
T0 = 0
acc = lambda t, T: ACC + (t * 8 + T) * 4
sS = lambda t, kt: SS + (t * 2 + kt) * 4
sB, sH, sW, sROT = 20, 21, 22, 23
RX, RWQ, RK, RV, RWO, RWS, ROUT = 24, 28, 32, 36, 40, 44, 48
sWOI = 52
XS, WS = 56, 64
sPS = 56
sW2K, sW4K, sHQ, sJ, sKO, sVO, sWO, sXO, sTAG, sSC, sT1, sT2, sT3, sTHR = 72, 73, 74, 75, 76, 77, 78, 79, 80, 81, 82, 83, 84, 85
sOST, sF1, sF2, sPL = 86, 87, 88, 89
sCK, sOLD = 90, 96
STAMP = 100
KBASE, CBASE, VBASE, WQBASE, XBASE = 0, 65536, 98304, 40960, 90112
wqslot = lambda s: ((s + 1) % 3) * 16384
xslot = lambda n: ((n + 1) % 6) * 8192
blocks = lambda a, n: [f"L{b}" for b in range(a // 8192, (a + n - 1) // 8192 + 1)]
PART_OFF = 13 << 20
F1_OFF, F2_OFF, FX_OFF, GEN_OFF, WS_USED = 32 << 20, 34 << 20, 36 << 20, 40 << 20, (40 << 20) + 0x10000
VXW, VF1, VFX = 253, 246, 247
sTAGL, sOWN, VFXA = 3, 96, 242
sPC, sY2K = 90, 92
LP, FS = 1152, 4224
BOUND = 0x8000
OFR = ((164, 168, 188, 204), (172, 176, 192, 208), (180, 184, 196, 200))
OF = 164
STAMP_OFF = 255 << 20

def mfma(d, a_, b_, c):
    ct = "0" if c is None else rng(c[0], c[1], 4)
    return Op(f"v_mfma_f32_16x16x32_bf16 {rng(d[0], d[1], 4)}, {rng(a_[0], a_[1], 4)}, {rng(b_[0], b_[1], 4)}, {ct}", "mfma",
              rd=R(*a_, 4) + R(*b_, 4), wr=R(*d, 4), c=[] if c is None else R(*c, 4))
def V(text, wr, rd, kind="valu", **k): return Op(text, kind, rd=rd, wr=wr, **k)
def SA(text, wr, rd=(), **k): return Op(text, "salu", rd=rd, wr=list(wr) + ["scc"] if k.pop("scc", False) else wr, **k)
def srd(r): return R("s", r, 4)

DOC = r'''; ---------------------------------------------------------------------------------------------------------------------------
; Fused  q = x wq  ->  softmax(q k^T / sqrt(128)) v  ->  @ wo.   One workgroup (4 waves, 1 per SIMD, 160 KiB LDS) per (batch, head);
; All matrix work is v_mfma_f32_16x16x32_bf16 on transposed tiles, so each result is already the next B operand:
;   Q^T = wq^T x^T (scaled by log2(e)/sqrt(128) in fp32, then bf16),  S^T = K Q^T - m,  P = exp2(S^T),  O^T = V^T P,  l = 1^T P.
; x, wq, K, V, wo reach LDS by LDS-DMA with XOR-swizzled sources; wq, V, wo are read with ds_read_b64_tr_b16.
; Hand-offs go through d_ws: data is always stored and loaded with sc1, a wave sets its flag only after s_waitcnt vmcnt has covered
;   met in the shared L2) when the four workgroups have told each other, at run time, that they run on one XCD; otherwise it is sc1.
; ---------------------------------------------------------------------------------------------------------------------------
'''
class Gen:
    def __init__(s, **cfg):
        s.c = dict(sp=4, xlat=48, x345=20, kvstart=244, kvburst=4, kvgap=34, wostart=30, wogap=30, kvkeep=5, slot_att=(2, 6, 33, 37, 41, 45, 49), thr=2.0 ** 30, slow=True,
                   xpace=12, xlead=0, bpos=40, mid=100, stamps=False, local=False, dump=None, kvnt=True, attpace=1.5, npf=12,
                   wont=False, wqnt=False, lb=2, l2=0, nhead1=7, pf=True, odl=((38, 42, 46, 50), (65, 69, 73, 77)), bar2=0, tagbar=4, kpos=range(34, 42), vpos=range(43, 59), xgap=42, rotfix=False, worot=False, rotp=1, a1=0, npoll=1, lp=1152, ptag='asap', ss=True, q78=(292, 332), skew=True, pk=True, pret=0, cv0=(36, 38, 39, 40), cv1=(43, 44, 46, 47), fxf=' sc1', fs=4224, gxit=11, retouch=False, pw=True, pin=True, split=True, ost='', loc=True, touch=[], asap=1, r1T=8, lf=['', '', ''], ord2=3, oburst=2, opp=True, gP=0, x2s=None, last0=True, gA=36, gB=54, gC=66, wt=1)
        s.c.update(init=["wq0", "x0", "x1", "x2", "x3", "x4", "x5"], kvstart=246, kvgap=30, wostart=-40, wogap=40)
        s.c.update(cfg)
        if s.c.get("wt"): s.c.update(ost=" sc1", lf=[" sc1"] * 3)
    def prologue(s):
        o = []; a = o.append
        def sa(t, wr=(), rd=()): a(Op(t, "salu", rd=rd, wr=wr))
        def va(t, wr, rd=(), **k): a(Op(t, "valu", rd=rd, wr=wr, **k))
        sa("s_cmp_ge_u32 s2, 256"); a(Op("s_cbranch_scc1 L_end", "branch"))
        sa("s_load_dwordx16 s[4:19], s[0:1], 0")
        if s.c["stamps"]: sa(f"{s.c.get('clk', 's_memrealtime')} s[{STAMP}:{STAMP+1}]")
        sa(f"s_getpc_b64 s[{sPC}:{sPC+1}]"); a(Op("L_pc:", "label"))
        sa(f"s_lshr_b32 s{sT2}, s2, 3"); sa(f"s_lshl_b32 s{sY2K}, s{sT2}, 11")
        va(f"v_lshl_add_u32 v2, v0, 6, s{sY2K}", ["v2"]); va("v_min_u32 v2, L_codeend-L_pc-4, v2", ["v2"]); va(f"v_mov_b32 v3, s{sPC+1}", ["v3"])
        va(f"v_add_co_u32 v2, vcc, s{sPC}, v2", ["v2", "vcc"]); va("v_lshrrev_b32 v1, 6, v0", ["v1"]); sa(f"s_and_b32 s{sT1}, s2, 7"); va("v_addc_co_u32 v3, vcc, 0, v3, vcc", ["v3", "vcc"])
        va("v_cmp_gt_u32 vcc, 32, v0", ["vcc"]); va("v_and_b32 v0, 63, v0", ["v0"]); va(f"v_readfirstlane_b32 s{sW}, v1", [f"s{sW}"], ["v1"], sub="rfl")
        sa("s_and_saveexec_b64 s[26:27], vcc"); a(Op("s_cbranch_execz L_nopf", "branch"))
        sa("global_load_dword v255, v[2:3], off"); a(Op("L_nopf:", "label")); sa("s_mov_b64 exec, -1")
        sa(f"s_and_b32 s{sB}, s{sT1}, 4"); sa(f"s_and_b32 s{sT3}, s{sT2}, 3"); sa(f"s_add_u32 s{sB}, s{sB}, s{sT3}")
        sa(f"s_and_b32 s{sH}, s{sT1}, 3"); sa(f"s_lshl_b32 s{sH}, s{sH}, 3"); sa(f"s_lshr_b32 s{sT2}, s{sT2}, 2"); sa(f"s_add_u32 s{sH}, s{sH}, s{sT2}")
        sa(f"s_lshl_b32 s{sROT}, s{sT3}, 1"); sa(f"s_add_u32 s{sROT}, s{sROT}, s{sH}")
        va("v_lshrrev_b32 v2, 4, v0", ["v2"]); va("v_and_b32 v3, 15, v0", ["v3"])
        va("v_lshrrev_b32 v4, 3, v0", ["v4"]); va("v_and_b32 v5, 7, v0", ["v5"])
        va("v_lshl_add_u32 v6, v1, 4, v2", ["v6"]); va("v_lshlrev_b32 v6, 13, v6", ["v6"])
        va("v_lshlrev_b32 v7, 1, v2", ["v7"]); va("v_xor_b32 v7, v7, v3", ["v7"]); va(f"v_lshl_add_u32 v{WQD}, v7, 4, v6", [f"v{WQD}"])
        va(f"v_add_u32 v{WQD+1}, {4*8192-1024}, v{WQD}", [f"v{WQD+1}"])
        va(f"v_xor_b32 v{WQD+2}, 128, v{WQD}", [f"v{WQD+2}"]); va(f"v_add_u32 v{WQD+2}, {2*(4*8192-1024)}, v{WQD+2}", [f"v{WQD+2}"])
        va(f"v_add_u32 v{WQD+3}, {4*8192-1024}, v{WQD+2}", [f"v{WQD+3}"])
        va("v_mul_u32_u24 v6, 48, v1", ["v6"]); va("v_add_u32 v6, v6, v4", ["v6"]); va("v_lshlrev_b32 v6, 10, v6", ["v6"])
        va("v_xor_b32 v7, v5, v2", ["v7"]); va(f"v_lshl_add_u32 v{XD}, v7, 4, v6", [f"v{XD}"])
        va(f"v_xor_b32 v{XD+1}, 64, v{XD}", [f"v{XD+1}"]); va(f"v_add_u32 v{XD+1}, {8192-1024}, v{XD+1}", [f"v{XD+1}"])
        sa(f"s_lshl_b32 s{sW2K}, s{sW}, 11", [], [f"s{sW}"]); sa(f"s_lshl_b32 s{sW4K}, s{sW}, 12")
        for k in range(3): o += s.rotk(k)
        sa(f"s_lshl_b32 s{sT1}, s{sH}, 8"); sa(f"s_mul_i32 s{sT2}, s{sB}, 196608"); sa(f"s_lshl_b32 s{sT3}, s{sB}, 12"); sa(f"s_add_u32 s{sT3}, s{sT3}, {GEN_OFF}")
        for r in (RX, RWQ): sa(f"s_mov_b32 s{r+3}, 0x20000")
        sa(f"s_mov_b32 s{RX+2}, 196608"); sa(f"s_sub_u32 s{RWQ+2}, 0x400000, s{sT1}")
        a(Op("s_waitcnt lgkmcnt(0)", "wait"))
        o += s.base(RWQ, 10, f"s{sT1}") + s.base(RX, 4, f"s{sT2}")
        sa(f"s_load_dword s{sTAG}, s[18:19], s{sT3}")
        return o
    def rotk(s, k):
        return [Op(t, "salu") for t in (f"s_add_u32 s{sT1}, s{sROT}, {k + 1}", f"s_and_b32 s{sT1}, s{sT1}, 7", f"s_lshl_b32 s{XS+k}, s{sT1}, 7", f"s_lshl_b32 s{WS+k}, s{sT1}, 19")]
    def base(s, r, p, off):
        return [Op(f"s_add_u32 s{r}, s{p}, {off}\n    s_addc_u32 s{r+1}, s{p+1}, 0", "salu"), Op(f"s_and_b32 s{r+1}, s{r+1}, 0xffff", "salu")]
    def prologue2(s):
        o = []; t = 249; u = 250
        def va(t, wr, rd=(), **k): o.append(Op(t, "valu", rd=rd, wr=wr, **k))
        va("v_bfe_u32 v6, v0, 2, 2", ["v6"]); va("v_and_b32 v7, 3, v0", ["v7"]); va("v_lshlrev_b32 v7, 3, v7", ["v7"])
        va(f"v_and_b32 v{t}, 1, v2", [f"v{t}"]); va(f"v_lshl_add_u32 v{t}, v{t}, 2, v6", [f"v{t}"])
        va(f"v_lshl_add_u32 v{VA}, v{t}, 5, v7", [f"v{VA}"])
        va(f"v_lshl_add_u32 v{u}, v2, 3, v6", [f"v{u}"]); va(f"v_lshl_add_u32 v{WQA}, v{u}, 8, v{VA}", [f"v{WQA}"])
        va(f"v_add_u32 v{WQA}, {WQBASE}, v{WQA}", [f"v{WQA}"])
        for T in range(1, 8): va(f"v_xor_b32 v{WQA+T}, {T*32}, v{WQA}", [f"v{WQA+T}"])
        va(f"v_lshrrev_b32 v{t}, 1, v3", [f"v{t}"]); va(f"v_xor_b32 v{t}, v{t}, v2", [f"v{t}"]); va(f"v_lshlrev_b32 v{t}, 4, v{t}", [f"v{t}"])
        va(f"v_lshl_add_u32 v{t}, v3, 7, v{t}", [f"v{t}"]); va(f"v_lshl_add_u32 v{XA}, v1, 11, v{t}", [f"v{XA}"])
        va(f"v_add_u32 v{XA}, {XBASE}, v{XA}", [f"v{XA}"]); va(f"v_xor_b32 v{XA+1}, 64, v{XA}", [f"v{XA+1}"])
        return o
    def setup(s, gtag, gfx):
        o = []; t = 249; u = 250
        def sa(x): o.append(Op(x, "salu"))
        def va(x, wr): o.append(Op(x, "valu", wr=wr))
        for k in range(3, 8): o += s.rotk(k)
        n_rot = len(o)
        sa(f"s_lshl_b32 s{sT3}, s{sB}, 5"); sa(f"s_add_u32 s{sT3}, s{sT3}, s{sH}"); sa(f"s_lshl_b32 s{sT1}, s{sT3}, 17")
        o += s.base(RK, 6, f"s{sT1}") + s.base(RV, 8, f"s{sT1}")
        for r in (RK + 2, RK + 3, RV + 2, RV + 3, RWO + 3, RWS + 3, ROUT + 3): sa(f"s_mov_b32 s{r}, 0x20000")
        sa(f"s_lshl_b32 s{sPL}, s{sT3}, 2"); sa(f"s_add_u32 s{sPL}, s{sPL}, s{sW}"); sa(f"s_mul_i32 s{sOWN}, s{sPL}, {LP}"); sa(f"s_mul_i32 s{sPL}, s{sPL}, 10752"); sa(f"s_add_u32 s{sPL}, s{sPL}, {PART_OFF}")
        sa(f"s_add_u32 s{sOWN}, s{sOWN}, {F2_OFF}"); sa(f"s_mul_i32 s{sT1}, s{sH}, {4 * LP}"); sa(f"s_sub_u32 s{sF2}, s{sOWN}, s{sT1}")
        sa(f"s_lshr_b32 s{sHQ}, s{sH}, 2"); sa(f"s_and_b32 s{sJ}, s{sH}, 3")
        sa(f"s_lshr_b32 s{sF1}, s{sT3}, 2"); sa(f"s_lshl_b32 s{sF1}, s{sF1}, 2"); sa(f"s_add_u32 s{sF1}, s{sF1}, s{sW}"); sa(f"s_mul_i32 s{sF1}, s{sF1}, {FS}"); sa(f"s_add_u32 s{sF1}, s{sF1}, {F1_OFF}")
        sa(f"s_lshl_b32 s{sT1}, s{sHQ}, 19"); sa(f"s_lshl_b32 s{sT2}, s{sJ}, 8"); sa(f"s_add_u32 s{sT1}, s{sT1}, s{sT2}")
        o += s.base(RWO, 12, f"s{sT1}"); sa(f"s_sub_u32 s{RWO+2}, 0x400000, s{sT1}")
        sa(f"s_mul_i32 s{sT3}, s{sB}, {192*1024}"); sa(f"s_add_u32 s{sT3}, s{sT3}, s{sT2}"); sa(f"s_lshl_b32 s{sT1}, s{sHQ}, 5"); sa(f"s_add_u32 s{sT3}, s{sT3}, s{sT1}")
        o += s.base(ROUT, 14, f"s{sT3}"); sa(f"s_sub_u32 s{ROUT+2}, {8*192*1024}, s{sT3}")
        sa(f"s_mov_b32 s{RWS}, s18"); sa(f"s_and_b32 s{RWS+1}, s19, 0xffff"); sa(f"s_mov_b32 s{RWS+2}, {WS_USED}")
        sa(f"s_lshl_b32 s{sT3}, s{sB}, 2"); sa(f"s_add_u32 s{sT3}, s{sT3}, s{sW}"); sa(f"s_lshl_b32 s{sT3}, s{sT3}, 5")
        for i in range(4):
            sa(f"s_xor_b32 s{sT1}, s{sH}, {i}"); sa(f"s_add_u32 s{sT2}, s{sT3}, s{sT1}"); sa(f"s_mul_i32 s{sOLD+i if i else sOST}, s{sT2}, 12288")
            sa(f"s_and_b32 s{sT1}, s{sT1}, 3"); sa(f"s_lshl_b32 s{sWOI+i}, s{sT1}, 17")
        sa(f"s_mov_b32 s{sTHR}, {hex(fbits(s.c['thr']))}"); sa(f"s_mov_b32 s{sSC}, {hex(fbits(1.4426950408889634 * 128 ** -0.5))}")
        sa(f"s_lshl_b32 s{sT1}, s{sJ}, 2"); sa(f"s_add_u32 s1, s{sT1}, s{sF1}"); sa(f"s_lshl_b32 s{sT2}, s{sHQ}, 4")
        sa(f"s_getreg_b32 s0, hwreg(HW_REG_XCC_ID, 0, 4)"); sa("s_add_u32 s0, s0, 1"); sa("s_lshl_b32 s0, s0, 24"); sa(f"s_add_u32 s{sT1}, s{sOWN}, {FX_OFF - F2_OFF}")
        S_ = o; o = []
        va(f"v_lshlrev_b32 v{VL16}, 4, v0", [f"v{VL16}"])
        va(f"v_lshl_add_u32 v{t}, v1, 3, v2", []); va(f"v_and_b32 v{u}, 15, v{t}", []); va(f"v_xor_b32 v{u}, v{u}, v3", []); va(f"v_lshlrev_b32 v{u}, 4, v{u}", [])
        va(f"v_lshl_add_u32 v{KD}, v{t}, 8, v{u}", [f"v{KD}"]); va(f"v_xor_b32 v{KD+1}, 64, v{KD}", [f"v{KD+1}"])
        va(f"v_lshlrev_b32 v{u}, 1, v2", []); va(f"v_xor_b32 v{u}, v{u}, v3", []); va(f"v_lshlrev_b32 v{u}, 4, v{u}", [])
        va(f"v_lshl_add_u32 v{VD}, v{t}, 8, v{u}", [f"v{VD}"]); va(f"v_xor_b32 v{VD+1}, 128, v{VD}", [f"v{VD+1}"])
        va(f"v_lshl_add_u32 v{WOD}, v{t}, 10, v{u}", [f"v{WOD}"]); va(f"v_xor_b32 v{WOD+1}, 128, v{WOD}", [f"v{WOD+1}"]); va(f"v_add_u32 v{WOD+1}, {4096-1024}, v{WOD+1}", [f"v{WOD+1}"])
        va(f"v_lshl_add_u32 v{u}, v2, 2, v6", []); va(f"v_lshl_add_u32 v{VA}, v{u}, 8, v{VA}", [f"v{VA}"]); va(f"v_add_u32 v{VA}, {VBASE}, v{VA}", [f"v{VA}"])
        for T in range(1, 8): va(f"v_xor_b32 v{VA+T}, {T*32}, v{VA}", [f"v{VA+T}"])
        va(f"v_and_b32 v{t}, 1, v2", []); va(f"v_lshrrev_b32 v{u}, 1, v2", []); va(f"v_lshl_add_u32 v{t}, v{t}, 1, v{u}", [])
        va(f"v_xor_b32 v{t}, v{t}, v3", []); va(f"v_lshlrev_b32 v{t}, 4, v{t}", []); va(f"v_lshl_add_u32 v{KA}, v3, 8, v{t}", [f"v{KA}"])
        for d in range(1, 4): va(f"v_xor_b32 v{KA+d}, {d*64}, v{KA}", [f"v{KA+d}"])
        for i in range(4): va(f"v_mov_b32 v{ONES+i}, 0x3f803f80", [f"v{ONES+i}"])
        va("v_mul_u32_u24 v251, 48, v1", []); va("v_add_u32 v251, v251, v3", []); va("v_lshlrev_b32 v251, 10, v251", []); va("v_lshl_add_u32 v251, v2, 3, v251", ["v251"])
        if s.c["retouch"]:
            va(f"v_and_b32 v{t}, 3, v0", []); va(f"v_lshl_add_u32 v{t}, v1, 2, v{t}", []); va(f"v_lshl_add_u32 v{t}, v{t}, 7, s{sY2K}", []); va(f"v_min_u32 v{t}, L_codeend-L_pc-4, v{t}", [])
            va(f"v_mov_b32 v241, s{sPC+1}", []); va(f"v_add_co_u32 v240, vcc, s{sPC}, v{t}\n    s_nop 1\n    v_addc_co_u32 v241, vcc, 0, v241, vcc", ["v240", "v241", "vcc"])
        V_ = o; o = []
        for i, x in enumerate(S_): x.chain = "setup_s"; x.earliest = 0; x.latest = 4 + i if i < n_rot else gtag - 2
        for x in V_: x.chain = "setup_v"; x.earliest = 0; x.latest = gtag - 2
        tg = Op(f"s_waitcnt lgkmcnt(0)\n    s_add_u32 s{sTAG}, s{sTAG}, 1\n    s_add_u32 s0, s0, s{sTAG}", "salu", chain="setup_s", earliest=gtag, latest=gtag); tg.waitall = "lg"
        for i in range(4): va(f"v_mov_b32 v{QF+i}, s0", [f"v{QF+i}"])
        va(f"v_lshrrev_b32 v{VF1}, 1, v7", []); va(f"v_add_u32 v{u}, s{sT2}, v{VF1}", []); va(f"v_add_u32 v{VF1}, s{sF1}, v{VF1}", []); va(f"v_mul_u32_u24 v{VFXA}, {LP}, v{u}", [])
        for x in o: x.chain = "setup_v"; x.after = [tg]; x.earliest = gtag + 1; x.latest = gfx - 2
        fx = Op(f"s_mov_b64 exec, 0xff\n    buffer_store_dwordx4 {rng('v', QF, 4)}, v{VL16}, s[{RWS}:{RWS+3}], s{sT1} offen sc1\n    s_mov_b64 exec, -1", "store",
                rd=R("v", QF, 4), chain="vm", after=[o[-1]], earliest=gfx, latest=gfx)
        return S_ + V_ + [tg] + o, fx
    def dma(s, S, m0base, ldsaddr, soff_ops, sreg, rsrc, voffs, nt, lds, after=(), earliest=None):
        ops = []
        E = earliest if isinstance(earliest, (list, tuple)) else [earliest] * len(voffs)
        e0 = E[0]
        m = Op(f"s_add_u32 m0, s{m0base}, {ldsaddr}", "salu", wr=["m0"], earliest=None if e0 is None else e0 - 5, latest=None if e0 is None else e0 - 1)
        if e0 is None: S.append(m)
        for t_, wr in soff_ops: S.append(Op(t_, "salu", wr=wr, earliest=None if e0 is None else e0 - 6, latest=None if e0 is None else e0 - 2))
        if e0 is not None: S.append(m)
        for i, v in enumerate(voffs):
            off = f" offset:{1024*i}" if i else ""
            d = Op(f"buffer_load_dwordx4 v{v}, s[{rsrc}:{rsrc+3}], s{sreg} offen{off}{' nt' if nt else ''} lds", "dma",
                   rd=["m0", f"s{sreg}", f"v{v}"], lds_wr=lds, after=after, earliest=E[i], latest=E[i] if isinstance(earliest, (list, tuple)) else None, chain="vm")
            S.append(d); ops.append(d)
        return ops
    def dK(s, S, j, **k): return s.dma(S, sW2K, s.blk[f'k{j}'] * 8192, [(f"s_mov_b32 s{sKO}, {j*8192}", [f"s{sKO}"])], sKO, RK, [KD, KD+1], s.c["kvnt"], [], **k)
    def dV(s, S, j, **k): return s.dma(S, sW2K, s.blk[f'v{j}'] * 8192, [(f"s_mov_b32 s{sVO}, {j*8192}", [f"s{sVO}"])], sVO, RV, [VD, VD+1], s.c["kvnt"], [], **k)
    def dWQ(s, S, st, **k): return s.dma(S, sW4K, WQBASE + wqslot(st), [], WS + st, RWQ, [WQD + i for i in range(4)], s.c["wqnt"], [], **k)
    def dX(s, S, n, **k):
        st, t = divmod(n, 3)
        return s.dma(S, sW2K, XBASE + xslot(n), [(f"s_add_u32 s{sXO}, s{XS+st}, {t*16384}", [f"s{sXO}"])], sXO, RX, [XD, XD+1], False, [f"X{(n+1)%6}"], **k)
    def dWO(s, S, kk, **k):
        return s.dma(S, sW2K, s.blk[f"o{kk}"] * 8192, [(f"s_add_u32 s{sWO}, s{sWOI + kk//4}, " + (f"s{WS + kk%4}" if s.c["worot"] else f"{(kk%4)*32768}"), [f"s{sWO}"])], sWO, RWO, [WOD, WOD+1], s.c["wont"], [], **k)
    def oepi(s, t, S, check=True):
        st_flag = s.c["ost"]
        l = f"v{LS+4*t}"; rc = f"v{LS+4*t+1}"
        S.append(V(f"v_rcp_f32 {rc}, {l}", [rc], [l], kind="trans"))
        if check: S.append(V(f"v_cmp_nge_f32 s[{sCK+2*t}:{sCK+2*t+1}], s{sTHR}, {l}", [f"s{sCK+2*t}", f"s{sCK+2*t+1}"], [l], tag="eager"))
        for sp in range(4):
            dst = OFR[t][sp]
            for hlf in range(2):
                A = acc(t, 2 * sp + hlf)
                if s.c["pk"] and t >= s.c.get("pkt", 2):
                    for i in (0, 2): S.append(V(f"v_pk_mul_f32 v[{A+i}:{A+i+1}], v[{A+i}:{A+i+1}], v[{LS+4*t}:{LS+4*t+1}] op_sel:[0,1] op_sel_hi:[1,1]", R("v", A+i, 2), R("v", A+i, 2) + [rc], tag="eager", earliest=99999))
                else:
                    for i in range(4): S.append(V(f"v_mul_f32 v{A+i}, {rc}, v{A+i}", [f"v{A+i}"], [f"v{A+i}", rc], tag="eager"))
                for p in range(2):
                    S.append(V(f"v_cvt_pk_bf16_f32 v{dst+2*hlf+p}, v{A+2*p}, v{A+2*p+1}", [f"v{dst+2*hlf+p}"], [f"v{A+2*p}", f"v{A+2*p+1}"], tag="eager"))
            if check and t == 2 and s.c["x2s"]: continue
            if sp == 0: S.append(Op(f"s_add_u32 s{sXO}, s{sOST}, {t*4096}", "salu", wr=[f"s{sXO}"]))
            off = f" offset:{sp*1024}" if sp else ""
            o = Op(f"buffer_store_dwordx4 {rng('v', dst, 4)}, v{VL16}, s[{RWS}:{RWS+3}], s{sXO} offen{off}{st_flag}", "store",
                   rd=R("v", dst, 4) + [f"v{VL16}", f"s{sXO}"], chain="vm", tag="asap" if s.c.get("asap") else "")
            if check and t < 2 and s.c["odl"][t]: o.latest = 408 + 51 * 14 + s.c["odl"][t][sp]
            S.append(o)
            if check: s.ostores.append(o)
    def stream1(s):
        c = s.c; S = []; nm = [0]; ev = []; seq = [0]
        def at(g, fn): heapq.heappush(ev, (g, seq[0], fn)); seq[0] += 1
        def M(op):
            S.append(op); nm[0] += 1
            if nm[0] - 1 in bargaps: return
            while ev and ev[0][0] <= nm[0] - 1: heapq.heappop(ev)[2]()
        XF = lambda n, ks: 64 + n * 8 + ks * 4
        WF = lambda T, ks, st=0: (64 if st == 7 and c["ss"] else 0) + T * 8 + ks * 4
        D = {}
        RD = {}
        BAR = {}
        def bar(name, g, vm=(), lg=()):
            b = Op("s_barrier", "bar", earliest=g, latest=g, chain="bar"); b.need_vm = [o for n in vm for o in D[n]]; b.need_lgkm = [o for n in lg for o in RD[n]]
            S.append(b); BAR[name] = b; return b
        def xread(n, e=None):
            RD[f"x{n}"] = [Op(f"ds_read_b128 {rng('a', XF(n, ks), 4)}, v{XA+ks} offset:{xslot(n)}", "ds", rd=[f"v{XA+ks}"], wr=R("a", XF(n, ks), 4),
                              lds_rd=[f"X{(n+1)%6}"], earliest=e) for ks in range(2)]
            S.extend(RD[f"x{n}"])
        def wqread(st, T):
            for ks in range(2):
                for r in range(2):
                    o = Op(f"ds_read_b64_tr_b16 {rng('a', WF(T, ks, st) + 2*r, 2)}, v{WQA+T} offset:{wqslot(st) + ks*8192 + r*1024}", "ds",
                           rd=[f"v{WQA+T}"], wr=R("a", WF(T, ks, st) + 2*r, 2), after=[BAR[f"q{st}"]])
                    S.append(o); RD.setdefault(f"wq{st}", []).append(o)
        KF = lambda j, kt, ds: ((128 if c["ss"] else 64) if j == 0 else 0) + (kt * 4 + ds) * 4
        def pin(ops, g0, step=1):
            if g0 is None or not c["pin"]: return
            if isinstance(g0, list):
                for o, g_ in zip(ops, g0): o.earliest = o.latest = g_
                return
            for i, o in enumerate(ops): o.earliest = o.latest = g0 + i * step
        def kread(j, b, e=None, p=None):
            RD[f"k{j}"] = [Op(f"ds_read_b128 {rng('a', KF(j, kt, ds), 4)}, v{KA+ds} offset:{s.blk[f'k{j}']*8192 + kt*4096}", "ds", rd=[f"v{KA+ds}"],
                              wr=R("a", KF(j, kt, ds), 4), after=[b], earliest=e) for kt in range(2) for ds in range(4)]
            pin(RD[f"k{j}"], p); S.extend(RD[f"k{j}"])
        VF = lambda j: 64 if j == 15 and c["skew"] else 32
        def vread(j, b, p=None):
            RD[f"v{j}"] = [Op(f"ds_read_b64_tr_b16 {rng('a', VF(j) + T*4 + 2*r, 2)}, v{VA+T} offset:{s.blk[f'v{j}']*8192 - VBASE + r*4096}", "ds", rd=[f"v{VA+T}"],
                              wr=R("a", VF(j) + T*4 + 2*r, 2), after=[b]) for T in range(8) for r in range(2)]
            pin(RD[f"v{j}"], p); S.extend(RD[f"v{j}"])
        bp = c["bpos"]
        SS_ = c["ss"]
        bq = lambda st: -1 if st == 0 else (c["q78"][st - 7] if SS_ and st >= 7 else (st - 1) * 48 + bp)
        A0 = 384
        it0 = lambda j: A0 + 24 + 51 * j
        battn = lambda j: it0(j) + (7 if j == 14 and c["skew"] else 33)
        NG = it0(15) + 27
        gb = lambda nme: bq(int(nme[1:])) if nme[0] == "q" else battn(int(nme[1:]))
        hasb = lambda j: not c["bar2"] or j % 2 == 0 or j > c["bar2"]
        up = lambda j: next(x for x in range(j, 16) if x == 15 or hasb(x))
        dn = lambda j: next(x for x in range(j, -1, -1) if hasb(x))
        bars = [f"q{i}" for i in range(1, 9 if SS_ else 8)] + [f"a{j}" for j in range(15) if hasb(j)]
        init = c.get("init", ["wq0", "x0", "x1", "x2", "x3", "x4", "x5", "wq1", "k0", "k1", "v0", "wq2"])
        slots = list(range(1, it0(0) + 30, c["sp"])) + [it0(j) + o for j in range(15) for o in c["slot_att"] if it0(j) + o >= it0(0) + 30] + list(range(it0(15) + 1, NG, c["sp"]))
        slots.sort()
        xdl = lambda n: (280, 312, 350, 296, 314, 352)[n - 18] if SS_ and n >= 18 else 48 * (n // 3) - 8 + 2 * (n % 3)
        xrd = {n: (-1 if n < 3 else min(c["x345"] + 2 * (n - 3), xdl(n))) for n in range(6)}
        free = {b_: (-1, None) for b_ in (0, 1, 2, 3, 4, 17, 18, 19)}
        free.update({5: (bq(6), "q6"), 6: (bq(6), "q6"), 7: (bq(7), "q7"), 8: (bq(7), "q7"), 9: (battn(0), "a0"), 10: (battn(0), "a0")})
        if SS_: free.update({b_: (bq(8), "q8") for b_ in (7, 8, 9, 10)})
        xfree = {}
        def xdead(n):
            nb = next(x for x in bars if gb(x) >= xrd[n] + 10); xfree[n] = nb; free[11 + (n + 1) % 6] = (gb(nb), nb)
        s.blk = {}
        kvorder = ["k0", "k1", "v0"] + [x for j in range(1, 15) for x in (f"k{j+1}", f"v{j}")] + ["v15"]
        def take(nme, g):
            cand = [b_ for b_ in (range(8) if nme[0] == "k" else range(19, 11, -1)) if b_ in free and free[b_][0] <= g]
            if not cand: return None
            b_ = cand[0]; dep = free[b_][1]; j = int(nme[1:]); s.blk[nme] = b_
            fb = up(max(0, j - 1) if nme[0] == "k" else j)
            if fb < (14 if nme[0] == "v" and c["skew"] else 15): free[b_] = (battn(fb), f"a{fb}")
            else: del free[b_]
            return (dep,)
        head = []
        for it in init:
            if it[0] in "kv": take(it, -1)
            f = {"w": s.dWQ, "x": s.dX, "k": s.dK, "v": s.dV}[it[0]]
            head.append([]); D[it] = f(head[-1], int(it.lstrip("wqxkv")))
        s.headgroups = head
        plan = []
        qwq = [st for st in range(8) if f"wq{st}" not in init]; qx = [n for n in range(24) if f"x{n}" not in init]; qkv = [x for x in kvorder if x not in init]
        qwo = list(range(16))
        forced = [tuple(x) for x in c.get("forced", [])]
        nkv = 0; lastkv = -99; lastwo = -99; i = 0
        while i < len(slots) and (qwq or qx or qkv or qwo):
            g = slots[i]; pick = None
            if forced and g >= forced[0][1]:
                nme = forced.pop(0)[0]; qkv.remove(nme); take(nme, g); pick = (nme, 2, None)
            elif qwq and bq(max(0, qwq[0] - 2)) < g and not (qx and qx[0] < 6): st = qwq.pop(0); pick = (f"wq{st}", 4, f"q{st-2}" if st > 2 else None)
            elif qx and (qx[0] < 6 or xrd[qx[0] - 6] + 7 <= g):
                n = qx.pop(0); pick = (f"x{n}", 2, None); xrd[n] = min(xdl(n), slots[i + 1] + c["xlat"])
                if n >= 18: xdead(n)
            need = lambda x: battn(dn(max(0, int(x[1:]) - (2 if x[0] == "k" else 1))))
            if pick is None and qkv and g >= c["kvstart"] and (nkv < c["kvburst"] + (g - c["kvstart"]) / c["kvgap"] or g >= need(qkv[0]) - c.get("kvlead", 170)):
                dep = take(qkv[0], g)
                if dep: pick = (qkv.pop(0), 2, dep[0]); nkv += 1; lastkv = g
            if pick is None and qwo and g >= it0(0) + c["wostart"] and i + 1 < len(slots) and g >= lastwo + c["wogap"]:
                nk = sum(x[0] == "k" for x in qkv); nv_ = sum(x[0] == "v" for x in qkv)
                for b_ in (8, 9, 10, 11, 7, 12, 6, 13, 5, 14, 4, 15, 3, 16, 2, 17, 1, 18, 0, 19):
                    if b_ not in free or free[b_][0] > g: continue
                    if not 8 <= b_ < 12:
                        left = [x for x in free if (x < 8) == (b_ < 8) and not 8 <= x < 12 and x != b_]
                        if len(left) < min(c["kvkeep"], 2 + (nk if b_ < 8 else nv_)) and (nk if b_ < 8 else nv_): continue
                    kk = qwo.pop(0); s.blk[f"o{kk}"] = b_; pick = (f"o{kk}", 2, free[b_][1]); del free[b_]; lastwo = g; break
            if pick is None: i += 1; continue
            plan.append((pick[0], slots[i:i + pick[1]], pick[2])); i += pick[1]
        assert not (qwq or qx or qkv), (qwq, qx, qkv)
        s.wo_left = qwo; s.plan = plan; s.xrd = xrd
        bar("q0", -1, vm=["wq0"])
        for n in range(3): xread(n, -1)
        for T in range(8): wqread(0, T)
        first_kv = min(gs[0] for nme, gs, d in plan if nme[0] in "kv")
        gfx = first_kv + 3; chain_, fx = s.setup(bq(c["tagbar"]), gfx); S.extend(chain_); at(gfx, lambda: S.append(fx))
        assert bq(c["tagbar"]) < first_kv - 12
        for n in range(3, 24): at(xrd[n], lambda n=n: xread(n, xrd[n]))
        for nme, gs, dep in plan:
            def f(nme=nme, gs=gs, dep=dep):
                kw = dict(after=[BAR[dep]] if dep else [], earliest=list(gs))
                n = int(nme.lstrip("wqxkvot"))
                D[nme] = {"w": s.dWQ, "x": s.dX, "k": s.dK, "v": s.dV, "o": s.dWO}[nme[0]](S, n, **kw)
            at(gs[0], f)
        for g_ in ([330] + [it0(j) + c["xgap"] for j in (2, 6, 10, 14)] if c["retouch"] else []):
            at(g_, lambda g_=g_: S.append(Op("global_load_dword v255, v[240:241], off", "load", chain="vm", earliest=g_, latest=g_)))
        gx = it0(c["gxit"]) + c["xgap"]
        def xcheck():
            S.append(Op(f"s_add_u32 s{sXO}, s{sF2}, {FX_OFF - F2_OFF}", "salu", wr=[f"s{sXO}"], earliest=gx - 3, latest=gx - 1))
            S.append(Op(f"buffer_load_dword v{VFX}, v{VFXA}, s[{RWS}:{RWS+3}], s{sXO} offen{c['fxf']}", "load", rd=[f"s{sXO}"], wr=[f"v{VFX}"], chain="vm", earliest=gx, latest=gx))
        at(gx, xcheck)
        s.D = D
        bargaps = {gb(x) for x in bars}
        def qepi(t):
            for ds in range(4):
                for hlf in range(2):
                    A = acc(t, 2 * ds + hlf)
                    for i in range(4): S.append(V(f"v_mul_f32 v{A+i}, s{sSC}, v{A+i}", [f"v{A+i}"], [f"v{A+i}"], tag="eager"))
                    for p in range(2):
                        q = QF + (t * 4 + ds) * 4 + 2 * hlf + p
                        S.append(V(f"v_cvt_pk_bf16_f32 v{q}, v{A+2*p}, v{A+2*p+1}", [f"v{q}"], [f"v{A+2*p}", f"v{A+2*p+1}"], tag="eager"))
                q = QF + (t * 4 + ds) * 4
                for p in range(2): S.append(V(f"v_permlane16_swap_b32 v{q+p}, v{q+2+p}", [f"v{q+p}", f"v{q+2+p}"], [f"v{q+p}", f"v{q+2+p}"], kind="perm"))
        def qbar():
            st = next((x for x in range(1, 9 if SS_ else 8) if bq(x) == nm[0] - 1), None)
            if st is None: return
            kv0 = ["k0", "k1", "v0"]
            if SS_ and st >= 7: vm, lg = (["wq7"], []) if st == 7 else (kv0, ["wq6", "wq7"])
            else: vm, lg = [f"wq{st}"] + (kv0 if st == 7 else []), [f"wq{st-1}"]
            bar(f"q{st}", bq(st), vm=vm, lg=lg + [f"x{n}" for n in xfree if xfree[n] == f"q{st}"])
            while ev and ev[0][0] <= nm[0] - 1: heapq.heappop(ev)[2]()
            if SS_ and st == 7:
                for T in range(8): wqread(7, T)
            if SS_ and st == 8: kread(0, BAR["q8"])
        def qp(st, T, t):
            for ks in range(2):
                M(mfma(("v", acc(t, T)), ("a", WF(T, ks, st)), ("a", XF(st * 3 + t, ks)), None if st == 0 and ks == 0 else ("v", acc(t, T)))); qbar()
        for st in range(6 if SS_ else 8):
            order = [(T, t) for T in range(8) for t in range(3)] if st < 7 else [(T, t) for t in range(3) for T in range(8)]
            for T, t in order:
                qp(st, T, t)
                if st == 7 and T == 7: qepi(t)
            if st < 7:
                for T in range(8): wqread(st + 1, T)
            if st == 6: kread(0, BAR["q7"], e=7 * 48 + 8)
        if not SS_: kread(1, BAR["q7"]); vread(0, BAR["q7"])
        def qk(j, t):
            for kt in range(2):
                for ds in range(4):
                    cc = ("v", sS(t, kt)) if ds else (None if j == 0 else ("v", NM + 4 * t))
                    M(mfma(("v", sS(t, kt)), ("a", KF(j, kt, ds)), ("v", QF + (t * 4 + ds) * 4), cc))
        def firstmax(t):
            r = [f"v{sS(t, 0) + i}" for i in range(8)]; m, tm = f"v{2*t}", f"v{2*t+1}"
            S.append(V(f"v_max3_f32 {m}, {r[0]}, {r[1]}, {r[2]}", [m], r[0:3]))
            S.append(V(f"v_max3_f32 {m}, {m}, {r[3]}, {r[4]}", [m], [m] + r[3:5]))
            S.append(V(f"v_max3_f32 {m}, {m}, {r[5]}, {r[6]}", [m], [m] + r[5:7]))
            S.append(V(f"v_max_f32 {m}, {m}, {r[7]}", [m], [m, r[7]]))
            for sw in ("16", "32"):
                S.append(V(f"v_mov_b32 {tm}, {m}", [tm], [m]))
                S.append(V(f"v_permlane{sw}_swap_b32 {m}, {tm}", [m, tm], [m, tm], kind="perm"))
                S.append(V(f"v_max_f32 {m}, {m}, {tm}", [m], [m, tm]))
            for i in range(4): S.append(V(f"v_sub_f32 v{NM+4*t+i}, 0, {m}", [f"v{NM+4*t+i}"], [m]))
            for x in r: S.append(V(f"v_sub_f32 {x}, {x}, {m}", [x], [x, m]))
            for o in S[-22:]: o.tag = "eager"
        PR = lambda j, t: NM if (j, t) == (15, 2) and c["skew"] else PP + 4 * t
        def softmax(j, t, pe=None, pc=None):
            E = [V(f"v_exp_f32 v{x}, v{x}", [f"v{x}"], [f"v{x}"], kind="trans") for x in range(sS(t, 0), sS(t, 0) + 8)]
            C = [V(f"v_cvt_pk_bf16_f32 v{PR(j, t)+p}, v{sS(t, 0)+2*p}, v{sS(t, 0)+2*p+1}", [f"v{PR(j, t)+p}"], [f"v{sS(t, 0)+2*p}", f"v{sS(t, 0)+2*p+1}"]) for p in range(4)]
            pin(E, pe)
            if isinstance(pc, tuple) and c["pin"]:
                for o, g_ in zip(C, pc): o.earliest = o.latest = g_
            else: pin(C, pc)
            if pe is None:
                for o in C: o.tag = "eager"
            S.extend(E + C)
        def pv(j, t):
            M(mfma(("v", LS + 4 * t), ("v", ONES), ("v", PR(j, t)), ("v", LS + 4 * t) if j else None))
            for T in range(8): M(mfma(("v", acc(t, T)), ("a", VF(j) + T * 4), ("v", PR(j, t)), ("v", acc(t, T)) if j else None))
        s.ostores = []
        oepi = lambda t: s.oepi(t, S)
        def first(t): qk(0, t); firstmax(t); softmax(0, t)
        if SS_:
            for st in (6, 7):
                for T in range(8): qp(st, T, 0)
            qepi(0)
            for T in range(8): qp(6, T, 1); qp(7, T, 1)
            qepi(1); first(0)
            for T in range(8): qp(6, T, 2); qp(7, T, 2)
            qepi(2); kread(1, BAR["q8"]); vread(0, BAR["q8"]); first(1)
        else:
            for t in range(3): first(t)
        for j in range(14 if c["skew"] else 16):
            for t in range(3):
                if SS_ and j == 0 and t == 1: first(2)
                if t == 2 and j < 15 and not hasb(j): BAR[f"a{j}"] = BAR[f"a{j-1}"]
                if t == 2 and j < 15 and hasb(j):
                    vm = ([f"k{j+2}"] if j < 14 else []) + [f"v{j+1}"] + ([f"k{j+3}", f"v{j+2}"] if not hasb(j + 1) else [])
                    lg = [f"k{j+1}", f"v{j}"] + ([f"k{j}", f"v{j-1}"] if j and not hasb(j - 1) else []) + (["k0"] + ([] if SS_ else ["wq7"]) if j == 0 else []) + [f"x{n}" for n in xfree if xfree[n] == f"a{j}"]
                    bar(f"a{j}", battn(j), vm=vm, lg=lg)
                    while ev and ev[0][0] <= nm[0] - 1: heapq.heappop(ev)[2]()
                if j < 15: qk(j + 1, t)
                g0 = it0(j)
                if t == 2 and j < 14: kread(j + 2, BAR[f"a{j}"], p=[g0 + x for x in c["kpos"]])
                pv(j, t)
                if j < 15:
                    steady = j >= 1
                    if t == 0: softmax(j + 1, t, *((g0 + 8, tuple(g0 + x for x in c["cv0"])) if steady else ()))
                    elif t == 1: softmax(j + 1, t, *((g0 + 25, tuple(g0 + x for x in c["cv1"])) if steady and j < 14 else ((g0 + 25, None) if steady else ())))
                    else: softmax(j + 1, t, *((g0 + 51 + 16, tuple(g0 + 51 + x for x in (24, 24, 34, 35))) if j < (13 if c["skew"] else 14) else ()))
                else: oepi(t)
            if j < 15: vread(j + 1, BAR[f"a{j}"], p=[it0(j) + x for x in c["vpos"]] if j < 14 else None)
        if c["skew"]:
            g0 = it0(14)
            qk(15, 0); bar("a14", battn(14), vm=["v15"], lg=["k15"])
            while ev and ev[0][0] <= nm[0] - 1: heapq.heappop(ev)[2]()
            vread(15, BAR["a14"])
            for o, g_ in zip(RD["v15"], (16, 16, 17, 18, 19, 20, 21, 21, 22, 22, 23, 23, 24, 24, 25, 25)): o.earliest = o.latest = g0 + g_
            pv(14, 0); softmax(15, 0, g0 + 8, tuple(g0 + x for x in (17, 18, 19, 20))); qk(15, 1); pv(15, 0); oepi(0); pv(14, 1); softmax(15, 1); qk(15, 2); softmax(15, 2); pv(15, 1); oepi(1); pv(14, 2); pv(15, 2); oepi(2)
        assert not ev, ev
        return S
    def stream2(s):
        c = s.c
        ring = [("a", 16 * i) for i in range(4)] + [("a", 208 + 16 * i) for i in range(3)] + [("v", QF + 16 * i) for i in range(3)]
        rp = [0]; U = {}
        OB = lambda i, t, sp: ("v", OFR[t][sp]) if i == 0 else ("a", 64 + ((i - 1) * 12 + t * 4 + sp) * 4)
        q4 = lambda p, r: [(p, r + 4 * n) for n in range(4)]
        ring = [q4(*x) for x in ring]
        def unit(S, i, T, after=(), slot=None):
            slot_given = slot is not None
            if slot is None: slot = ring[rp[0] % len(ring)]; rp[0] += 1
            U[i, T] = slot
            for sp in range(4):
                ad = s.blk[f"o{4*i+sp}"] * 8192; p, r0 = slot[sp]
                for r in range(2):
                    S.append(Op(f"ds_read_b64_tr_b16 {rng(p, r0 + 2*r, 2)}, v{WA + 8*(ad >> 16) + T} offset:{(ad & 65535) + r*4096}", "ds",
                                rd=[f"v{WA + 8*(ad >> 16) + T}"], wr=R(p, r0 + 2*r, 2), after=after, tag="eager" if slot_given and i else ""))
        def chain(S, i, T, t):
            for sp in range(4): S.append(mfma(("v", acc(t, T)), U[i, T][sp], OB(i, t, sp), None if i == 0 and sp == 0 else ("v", acc(t, T))))
        def oload(i, t, dst, g=None, so=sXO, step=4):
            dst.append(Op(f"s_add_u32 s{so}, s{sOLD+i}, {t*4096}", "salu", wr=[f"s{so}"], earliest=None if g is None else g - 3, latest=None if g is None else g - 1))
            for sp in range(4):
                p, r = OB(i, t, sp); off = f" offset:{sp*1024}" if sp else ""; e = None if g is None else g + step * sp
                dst.append(Op(f"buffer_load_dwordx4 {rng(p, r, 4)}, v{VL16}, s[{RWS}:{RWS+3}], s{so} offen{off}{c['lf'][i-1]}", "load",
                              rd=[f"v{VL16}", f"s{so}"], wr=R(p, r, 4), chain="vm", sub=1, earliest=e, latest=e))
        pre = [Op(f"s_and_b32 s{sT2}, s{sB}, {3 if c['worot'] else 0}", "salu"), Op(f"s_lshl_b32 s{sT2}, s{sT2}, 1", "salu"), Op(f"s_xor_b32 s{sT1}, s{sHQ}, s{sT2}", "salu"),
               Op(f"s_lshl_b32 s{sT1}, s{sT1}, 5", "salu", wr=[f"s{sT1}"]), V(f"v_subrev_u32 v240, {VBASE}, v{VA}", ["v240"], [f"v{VA}"]),
               V(f"v_xor_b32 v240, s{sT1}, v240", ["v240"], ["v240"])]
        for wdw in range(3):
            for T in range(8):
                r = WA + 8 * wdw + T
                pre.append(V(f"v_xor_b32 v{r}, {T*32}, v240", [f"v{r}"], ["v240"]) if wdw == 0 else V(f"v_add_u32 v{r}, 65536, v{r-8}", [f"v{r}"], [f"v{r-8}"]))
        s.pre2 = pre
        R0 = []
        O3 = c["ord2"] == 3
        H1 = ring[4:10] + [[("v", LS), ("v", LS + 4), ("v", LS + 8), ("v", ONES)], ring[3]]
        H23 = ring[0:3] + [[("v", OF + 16 * n + 4 * m) for m in range(4)] for n in range(3)]
        for T in range(8):
            unit(R0, 0, T, slot=ring[T % 3] if O3 else None)
            for t in range(3): chain(R0, 0, T, t)
        nT = c["r1T"]
        for T in range(nT): unit(R0, 1, T, slot=H1[T] if O3 else None)
        for T in range(1, 8):
            R0 += [Op(f"s_xor_b32 s{sT1}, s{sHQ}, {T}", "salu", wr=[f"s{sT1}"]), Op(f"s_sub_i32 s{sT1}, s{sT1}, s{sHQ}", "salu", rd=[f"s{sT1}"], wr=[f"s{sT1}"]),
                   Op(f"s_mul_i32 s{sT1}, s{sT1}, {16*10752}", "salu", rd=[f"s{sT1}"], wr=[f"s{sT1}"]),
                   Op(f"s_add_u32 s{sT1}, s{sT1}, s{sPL}", "salu", rd=[f"s{sT1}"], wr=[f"s{sT1}"]),
                   Op(f"s_add_u32 s{sPS+T-1}, s{sT1}, {(T-1)*1536}", "salu", rd=[f"s{sT1}"], wr=[f"s{sPS+T-1}"])]
        R0.append(V(f"v_lshrrev_b32 v241, 1, v{VL16}", ["v241"], []))
        S = R0; s.retry = []
        gA, gB, gC = c["gA"], c["gB"], c["gC"]
        wt = "sc1" in c["ost"]
        assert not wt or all("sc1" in x for x in c["lf"])
        S.append(V(f"v_cmp_ne_u32 vcc, s0, v{VFX}", ["vcc"], [f"v{VFX}"], earliest=gA - 6, latest=gA - 6))
        for n_, (r_, m_) in enumerate(((sTAGL, 0xff),)):
            S.append(Op(f"s_and_b32 s{sT2}, vcc_lo, {m_}\n    s_cselect_b32 s{r_}, s0, s{sTAG}" if c["loc"] else f"s_mov_b32 s{r_}, s0", "cbr", rd=["vcc"], wr=[f"s{r_}"],
                        earliest=gA - 3 + n_, latest=gA - 3 + n_))
        fl = Op(f"s_cmp_lg_u32 s{sTAGL}, s{sTAG}\n    s_cbranch_scc1 L_far\n    s_mov_b64 exec, 1\n    buffer_store_dword v6, v7, s[{RWS}:{RWS+3}], s1 offen\n    s_mov_b64 exec, -1\nL_farback:",
                "store", rd=[f"s{sTAGL}"], chain="vm", earliest=gA, latest=gA); fl.need_vm = list(s.ostores); S.append(fl)
        s.retry += [Op(x, "label" if x.endswith(":") else "salu") for x in
                    ("L_far:",) + (() if wt else ("buffer_wbl2 sc1", "s_waitcnt vmcnt(0)")) + ("s_mov_b64 exec, 1", f"buffer_store_dword v6, v7, s[{RWS}:{RWS+3}], s1 offen sc1", "s_mov_b64 exec, -1", "s_branch L_farback")]
        pl = f"buffer_load_dword v5, v{VF1}, s[{RWS}:{RWS+3}], 0 offen sc1"
        if c["a1"]:
            S += [V(f"v_cmp_lt_u32 vcc, 63, v{VL16}", ["vcc"], [], earliest=2), V(f"v_cndmask_b32 v3, v{VF1}, v4, vcc", ["v3"], ["vcc"], earliest=2), V("v_mov_b32 v5, 0", ["v5"], [], earliest=2)]
            al = f"buffer_atomic_or v5, v3, s[{RWS}:{RWS+3}], 0 offen sc0"
            S.append(Op(al, "load", rd=["v3", "v5"], wr=["v5"], chain="vm", sub=1, earliest=gB, latest=gB))
            S.append(V(f"v_cmp_ne_u32 vcc, s{sTAGL}, v5", ["vcc"], ["v5"], earliest=gC - 4, latest=gC - 4))
            go = Op("s_and_b32 vcc_lo, vcc_lo, 15\n    s_cbranch_scc1 L_await1\nL_go1:", "cbr", rd=["vcc"], earliest=gC, latest=gC); S.append(go)
            s.retry += [Op(x, "label" if x.endswith(":") else "salu") for x in
                        ("L_await1:", f"s_cmp_lg_u32 s{sTAGL}, s{sTAG}", "s_cbranch_scc1 L_wait1", f"s_mov_b32 s{sT3}, 0", "L_apoll1:", "v_mov_b32 v5, 0", al, "s_waitcnt vmcnt(0)",
                         f"v_cmp_ne_u32 vcc, s{sTAG}, v5", f"s_add_u32 s{sT3}, s{sT3}, 1", f"s_cmp_ge_u32 s{sT3}, {BOUND}", "s_cbranch_scc1 L_go1", "s_and_b32 vcc_lo, vcc_lo, 15", "s_cbranch_scc1 L_apoll1", "s_branch L_go1")]
        else:
            S.append(Op(pl, "load", wr=["v5"], chain="vm", sub=1, earliest=gB, latest=gB))
            S.append(V(f"v_cmp_ne_u32 vcc, s{sTAG if wt else sTAGL}, v5", ["vcc"], ["v5"], earliest=gC - 2, latest=gC - 2))
        if not c["a1"]: go = Op("s_cbranch_vccnz L_wait1\nL_go1:", "cbr", rd=["vcc"], earliest=gC, latest=gC); S.append(go)
        s.retry += [Op(x, "label" if x.endswith(":") else "salu") for x in
                    ("L_wait1:", f"s_mov_b32 s{sT3}, 0", "L_poll1:", pl, "s_waitcnt vmcnt(0)", f"v_cmp_ne_u32 vcc, s{sTAG}, v5", f"s_add_u32 s{sT3}, s{sT3}, 1", "s_nop 2",
                     "s_cbranch_vccz L_seen1", f"s_cmp_lt_u32 s{sT3}, {BOUND}", "s_cbranch_scc1 L_poll1", "L_seen1:") + (() if wt else (f"s_cmp_eq_u32 s{sTAGL}, s{sTAG}", "s_cbranch_scc1 L_go1",
                     "buffer_inv sc1", "s_waitcnt vmcnt(0)")) + ("s_branch L_go1",)]
        if c["x2s"]:
            gA2, gB2, gC2 = c["x2s"]
            S.append(Op(f"s_add_u32 s94, s{sOST}, 8192", "salu", wr=["s94"], earliest=0))
            late = [Op(f"buffer_store_dwordx4 {rng('v', OFR[2][sp], 4)}, v{VL16}, s[{RWS}:{RWS+3}], s94 offen{f' offset:{sp*1024}' if sp else ''} sc1", "store",
                       rd=R("v", OFR[2][sp], 4) + ["s94"], chain="vm", after=[go], earliest=gC + 1 + sp, latest=gC + 1 + sp) for sp in range(4)]
            S += late
            g = gC + 6; st_ = c.get("ostep", 4)
            for n, (i, t) in enumerate([(i, t) for t in range(2) for i in (1, 2, 3)]):
                oload(i, t, S, g, so=(sXO, sKO, sVO, sWO)[n % 4], step=st_ if g < 96 else 4); g += 4 * (st_ if g < 96 else 4)
                if n == c.get("nB", 3) - 1:
                    st = f"buffer_store_dword v6, v7, s[{RWS}:{RWS+3}], s1 offen offset:16"
                    f2 = Op(f"s_cmp_lg_u32 s{sTAGL}, s{sTAG}\n    s_cbranch_scc1 L_farb\n    s_mov_b64 exec, 1\n    {st}\n    s_mov_b64 exec, -1\nL_farbackb:", "store", chain="vm", earliest=gA2, latest=gA2)
                    f2.need_vm = late; S.append(f2); g = max(g, gA2 + 2)
                    s.retry += [Op(x, "label" if x.endswith(":") else "salu") for x in ("L_farb:", "s_mov_b64 exec, 1", st + " sc1", "s_mov_b64 exec, -1", "s_branch L_farbackb")]
            pb = f"buffer_load_dword v3, v{VF1}, s[{RWS}:{RWS+3}], 0 offen offset:16 sc1"
            gB2 = max(gB2, g - 2); gC2 = max(gC2, gB2 + 20)
            S.append(Op(pb, "load", wr=["v3"], chain="vm", sub=1, earliest=gB2, latest=gB2))
            S.append(V(f"v_cmp_ne_u32 vcc, s{sTAG}, v3", ["vcc"], ["v3"], earliest=gC2 - 2, latest=gC2 - 2))
            go2 = Op("s_cbranch_vccnz L_waitb\nL_gob:", "cbr", rd=["vcc"], earliest=gC2, latest=gC2); S.append(go2)
            s.retry += [Op(x, "label" if x.endswith(":") else "salu") for x in
                        ("L_waitb:", f"s_mov_b32 s{sT3}, 0", "L_pollb:", pb, "s_waitcnt vmcnt(0)", f"v_cmp_ne_u32 vcc, s{sTAG}, v3", f"s_add_u32 s{sT3}, s{sT3}, 1", "s_nop 2",
                         "s_cbranch_vccz L_gob", f"s_cmp_lt_u32 s{sT3}, {BOUND}", "s_cbranch_scc1 L_pollb", "s_branch L_gob")]
            for n, i in enumerate((1, 2, 3)):
                n0 = len(S); oload(i, 2, S, gC2 + 1 + 16 * n, so=(sXO, sKO, sVO)[n])
                for o in S[n0 + 1:]: o.after = [go2]
        else:
            seq = [(1, 0), (1, 1), (1, 2), (2, 0), (3, 0), (2, 1), (3, 1), (2, 2), (3, 2)] if not c["ord2"] else ([(i, t) for t in range(3) for i in (1, 2, 3)] if O3 else [(i, t) for i in (1, 2, 3) for t in range(3)])
            for n, (i, t) in enumerate(seq):
                n0 = len(S); nb = c.get("oburst", 0); np_ = max(0, (94 - gC - 2 + 3) // 16); so = (sXO, sKO, sVO, sWO)[n % 4]
                if n < np_ or not nb: oload(i, t, S, gC + 2 + 16 * n, so=so)
                elif n < np_ + nb: oload(i, t, S, 94, so=so, step=0)
                else: oload(i, t, S, 97 + 16 * (n - nb - np_), so=so)
                for o in S[n0 + 1:]: o.after = [go]
        g_ = c.get("gP1", 80) if O3 else 98
        P1 = Op("s_barrier", "bar", earliest=g_, latest=g_); P1.need_vm = s.wo_hi; S.append(P1)
        for t in range(0 if O3 else 3):
            for T in range(nT): chain(S, 1, T, t)
            if t == 0:
                for T in range(nT, 8): unit(S, 1, T)
            if nT == 8 and t == 2:
                if c["ord2"]:
                    for T in range(1, 5): unit(S, 2, T, [P1])
                else: unit(S, 2, 1, [P1]); unit(S, 3, 1, [P1])
        g1 = list(range(1, 1 + (4 if c["ord2"] else 3)))
        for T in range(nT, 8):
            for t in range(3): chain(S, 1, T, t)
            if c["ord2"]: unit(S, 2, g1[T - 4], [P1])
            elif T == 4: unit(S, 2, g1[0], [P1]); unit(S, 3, g1[0], [P1])
        s.pstores = []
        def publish(T, t):
            A = acc(0, T) if t < 2 else acc(2, T); src = acc(t, T); d = A + (2 if t == 1 else 0)
            for p in range(2): S.append(V(f"v_cvt_pk_bf16_f32 v{d+p}, v{src+2*p}, v{src+2*p+1}", [f"v{d+p}"], [f"v{src+2*p}", f"v{src+2*p+1}"]))
            if t == 1: o = Op(f"buffer_store_dwordx4 {rng('v', A, 4)}, v{VL16}, s[{RWS}:{RWS+3}], s{sPS+T-1} offen sc1", "store", rd=R("v", A, 4), chain="vm", tag=c["ptag"])
            elif t == 2: o = Op(f"buffer_store_dwordx2 {rng('v', A, 2)}, v241, s[{RWS}:{RWS+3}], s{sPS+T-1} offen offset:1024 sc1", "store", rd=R("v", A, 2), chain="vm", tag=c["ptag"])
            else: return
            S.append(o); s.pstores.append(o)
        if O3:
            g1 = [1, 2, 3]
            order = (2, 3, 0, 4, 5, 1)
            for n, (T, i) in enumerate((T, i) for T in g1 for i in (2, 3)): unit(S, i, T, [P1], H23[(0, 3, 4, 5, 2, 1)[n]])
            for t in range(3):
                for T in range(1 if c["last0"] else 0, 8): chain(S, 1, T, t)
                for T in g1: chain(S, 2, T, t); chain(S, 3, T, t); publish(T, t)
            ring[:] = H1[1:] if c["last0"] else H1; rp[0] = 0
        elif c["ord2"]:
            for t in range(3):
                for T in g1: chain(S, 2, T, t)
                if t == 0:
                    for T in g1: unit(S, 3, T, [P1])
            for t in range(3):
                for T in g1: chain(S, 3, T, t); publish(T, t)
        else:
            for T in g1[1:]: unit(S, 2, T, [P1]); unit(S, 3, T, [P1])
            for t in range(3):
                for T in g1:
                    chain(S, 2, T, t); chain(S, 3, T, t); publish(T, t)
        rest = [T for T in range(1, 8) if T not in g1] + [0]
        for T in rest:
            unit(S, 2, T, [P1]); unit(S, 3, T, [P1])
            for t in range(3):
                if T == 0 and O3 and c["last0"]: chain(S, 1, T, t)
                chain(S, 2, T, t); chain(S, 3, T, t)
                if T: publish(T, t)
        RA_ = lambda T: OF + (T - 1) * 4
        RB_ = lambda T: OF + 28 + (T - 1) * 2
        def inbox(T):
            return [Op(f"s_add_u32 s{sXO}, s{sPL}, {(T-1)*1536}", "salu", wr=[f"s{sXO}"]),
                    Op(f"buffer_load_dwordx4 {rng('v', RA_(T), 4)}, v{VL16}, s[{RWS}:{RWS+3}], s{sXO} offen sc1", "load", rd=[f"s{sXO}"], wr=R("v", RA_(T), 4)),
                    Op(f"buffer_load_dwordx2 {rng('v', RB_(T), 2)}, v241, s[{RWS}:{RWS+3}], s{sXO} offen offset:1024 sc1", "load", rd=[f"s{sXO}"], wr=R("v", RB_(T), 2))]
        F = []
        if c["opp"]:
            X = 0xF0 - 8 - 0; X = 232 - 0
            X = QF; e = dict(earliest=300)
            S += [V(f"v_lshrrev_b32 v0, 4, v{VL16}", ["v0"], [], **e), V("v_bfe_u32 v1, v0, 2, 2", ["v1"], ["v0"], **e), V("v_lshrrev_b32 v2, 4, v0", ["v2"], ["v0"], **e),
                  V("v_and_b32 v3, 1, v0", ["v3"], ["v0"], **e), V("v_lshlrev_b32 v3, 4, v3", ["v3"], ["v3"], **e), Op(f"s_movk_i32 s{sT2}, 0x3f80", "salu", wr=[f"s{sT2}"], **e),
                  V(f"v_lshlrev_b32 v3, v3, s{sT2}", ["v3"], ["v3", f"s{sT2}"], **e), V("v_cmp_eq_u32 vcc, v1, v2", ["vcc"], ["v1", "v2"], **e),
                  V("v_cndmask_b32 v3, 0, v3, vcc", ["v3"], ["v3", "vcc"], **e), V("v_and_b32 v1, 2, v0", ["v1"], ["v0"], **e), V("v_cmp_eq_u32 vcc, 0, v1", ["vcc"], ["v1"], **e),
                  V("v_cndmask_b32 v2, 0, v3, vcc", ["v2"], ["v3", "vcc"], **e), V("v_sub_u32 v3, v3, v2", ["v3"], ["v3", "v2"], **e),
                  V("v_and_b32 v1, 7, v0", ["v1"], ["v0"], **e), V(f"v_xor_b32 v1, s{sHQ}, v1", ["v1"], ["v1"], **e), V(f"v_lshl_add_u32 v1, v1, 2, s{sJ}", ["v1"], ["v1"], **e), V(f"v_mul_u32_u24 v1, {4 * LP}, v1", ["v1"], ["v1"], **e),
                  V("v_cmp_lt_u32 vcc, 7, v0", ["vcc"], ["v0"], **e), V("v_cndmask_b32 v1, v1, v4, vcc", ["v1"], ["v1", "vcc", "v4"], **e), V("v_mov_b32 v5, " + ("0" if c["gP"] else "s0"), ["v5"], [], **e)]
            pl = f"buffer_atomic_or v5, v1, s[{RWS}:{RWS+3}], s{sF2} offen sc0 sc1"
            if c["gP"]: S.append(Op(pl, "load", rd=["v1", "v5"], wr=["v5"], chain="vm", earliest=c["gP"]))
            for n, src in enumerate(("v2", "v3", "0", "0", "v2", "v3", "v2", "v3")): F.append(V(f"v_mov_b32 v{X+n}, {src}", [f"v{X+n}"], ["v2", "v3"]))
            F += [V(f"v_mov_b32 v{RB_(8)+n}, 0", [f"v{RB_(8)+n}"], []) for n in range(2)]
            raw = lambda t_, kind="salu", **k_: Op(t_, kind, **k_)
            w0 = raw("s_waitcnt vmcnt(0)", "wait"); w0.waitall = "vm"
            F += [V(f"v_mov_b32 v{X+8+n}, s{sTAG}", [f"v{X+8+n}"], []) for n in range(4)]
            F += [raw(f"s_mov_b32 s{sKO}, 0xffffff01"), raw(f"s_mov_b32 s{sT3}, 0"), w0, raw("s_mov_b64 exec, 0xff"),
                  raw(f"buffer_store_dwordx4 {rng('v', X + 8, 4)}, v{VL16}, s[{RWS}:{RWS+3}], s{sOWN} offen sc1"), raw("s_mov_b64 exec, -1")]
            F += s.stamp2("fl2")
            F += [Op("L_look:", "label"), V(f"v_cmp_eq_u32 vcc, s{sTAG}, v5", ["vcc"], []), raw("s_nop 3"), raw(f"s_andn2_b32 s{sVO}, vcc_lo, s{sKO}"), raw(f"s_or_b32 s{sKO}, s{sKO}, s{sVO}")]
            for T in range(1, 8):
                F += [raw(f"s_bitcmp1_b32 s{sVO}, {T}"), raw(f"s_cbranch_scc0 L_skip{T}", "branch")] + [raw(o.text) for o in inbox(T)] + [Op(f"L_skip{T}:", "label")]
            K = c["npoll"]; PV_ = X + 12
            pk_ = lambda n: f"v_mov_b32 v{PV_+n}, 0\n    " + pl.replace("v5,", f"v{PV_+n},")
            F += [raw(f"s_and_b32 s{sVO}, s{sKO}, 0xff"), raw(f"s_cmp_eq_u32 s{sVO}, 0xff"), raw("s_cbranch_scc1 L_all", "branch")]
            for n in range(K): F += [raw(pk_(n))] + ([raw(f"s_sleep {c['slp']}")] if n < K - 1 and c.get("slp") else [])
            F.append(Op("L_spin:", "label"))
            for n in range(K):
                F += [raw(f"s_waitcnt vmcnt({K-1})"), raw(f"v_mov_b32 v5, v{PV_+n}"), raw(f"v_cmp_eq_u32 vcc, s{sTAG}, v{PV_+n}"), raw("s_nop 3"),
                      raw(f"s_andn2_b32 s{sVO}, vcc_lo, s{sKO}"), raw("s_cbranch_scc1 L_look", "branch")] + ([raw(f"s_sleep {c['slp2']}")] if c.get("slp2") else []) + [raw(pk_(n))]
            F += [raw(f"s_add_u32 s{sT3}, s{sT3}, 1"), raw(f"s_cmp_lt_u32 s{sT3}, {BOUND}"), raw("s_cbranch_scc1 L_spin", "branch"), Op("L_all:", "label")] + s.stamp2("go2")
            F += [raw(f"s_or_b32 s{sT1}, s{sH}, s{sW}"), raw(f"s_cbranch_scc1 L_keep", "branch"), raw(f"s_lshl_b32 s{sT1}, s{sB}, 12"), raw(f"s_add_u32 s{sT1}, s{sT1}, {GEN_OFF}"),
                  raw("s_mov_b64 exec, 0xff"), raw(f"buffer_store_dwordx4 {rng('v', X + 8, 4)}, v{VL16}, s[{RWS}:{RWS+3}], s{sT1} offen sc1"), raw("s_mov_b64 exec, -1"),
                  raw("s_waitcnt vmcnt(1)"), raw("s_branch L_sum", "branch"), Op("L_keep:", "label"), raw("s_waitcnt vmcnt(0)", "wait"), Op("L_sum:", "label")]
            for t in range(2):
                for T in range(1, 8): F.append(mfma(("v", acc(t, 0)), ("v", X + 2 * t), ("v", RA_(T)), ("v", acc(t, 0))))
            for T in range(1, 8, 2): F.append(mfma(("v", acc(2, 0)), ("v", X + 4), ("v", RB_(T)), ("v", acc(2, 0))))
        for t in range(3):
            A = acc(t, 0)
            for p in range(2): F.append(V(f"v_cvt_pk_bf16_f32 v{A+p}, v{A+2*p}, v{A+2*p+1}", [f"v{A+p}"], [f"v{A+2*p}", f"v{A+2*p+1}"]))
            F.append(Op(f"s_mov_b32 s{sKO}, {t*16384}", "salu", wr=[f"s{sKO}"]))
            F.append(Op(f"buffer_store_dwordx2 {rng('v', A, 2)}, v251, s[{ROUT}:{ROUT+3}], s{sKO} offen", "store", rd=R("v", A, 2) + ["v251", f"s{sKO}"]))
        s.fin2 = F
        return S
    def slowpath(s):
        L = []; a = L.append
        raw = lambda t, kind="salu", **k: a(Op(t, kind, **k))
        va = lambda t, wr, rd=(), **k: a(V(t, wr, rd, **k))
        a(Op("L_slow:", "label")); w = Op("s_waitcnt vmcnt(0) lgkmcnt(0)", "wait"); w.waitall = True; a(w)
        ln, g, i_ = "v0", "v1", "v2"
        va(f"v_lshrrev_b32 v0, 4, v{VL16}", [ln]); va("v_lshrrev_b32 v1, 4, v0", [g]); va("v_and_b32 v2, 15, v0", [i_])
        va("v_and_b32 v3, 1, v1", ["v3"]); va("v_lshrrev_b32 v4, 1, v1", ["v4"]); va("v_lshl_add_u32 v3, v3, 1, v4", ["v3"])
        va("v_lshlrev_b32 v3, 4, v3", ["v3"]); va(f"v_lshl_add_u32 v{KA}, v2, 8, v3", [f"v{KA}"])
        va("v_lshlrev_b32 v3, 1, v1", ["v3"]); va("v_xor_b32 v3, v3, v2", ["v3"]); va("v_lshlrev_b32 v3, 4, v3", ["v3"])
        va(f"v_lshl_add_u32 v{VD}, v1, 8, v3", [f"v{VD}"]); va(f"v_xor_b32 v{VD+1}, 128, v{VD}", [f"v{VD+1}"])
        sp_ = s.spare
        raw(f"s_mov_b32 s{sVO}, {sp_[0]*8192}")
        for w_ in range(1, 4): raw(f"s_cmp_eq_u32 s{sW}, {w_}"); raw(f"s_cselect_b32 s{sVO}, {sp_[w_]*8192}, s{sVO}")
        raw(f"s_sub_u32 s{sT3}, s{sVO}, {VBASE}")
        for T in range(8): va(f"v_add_u32 v{232+T}, s{sT3}, v{VA+T}", [f"v{232+T}"])
        def kload():
            raw(f"s_add_u32 s{sT2}, s{sT1}, 4096", wr=[f"s{sT2}"])
            for kt in range(2):
                for ds in range(4):
                    a(Op(f"buffer_load_dwordx4 {rng('a', (kt*4+ds)*4, 4)}, v{KA}, s[{RK}:{RK+3}], s{(sT1, sT2)[kt]} offen offset:{ds*64}", "load", wr=R("a", (kt*4+ds)*4, 4)))
        def qk(cneg):
            for t in range(3):
                for kt in range(2):
                    for ds in range(4):
                        a(mfma(("v", sS(t, kt)), ("a", (kt*4+ds)*4), ("v", QF + (t*4+ds)*4), ("v", sS(t, kt)) if ds else (("v", NM + 4*t) if cneg else None)))
        def loop(lbl):
            raw("s_nop 7"); raw(f"s_add_u32 s{sT1}, s{sT1}, 8192"); raw(f"s_cmp_lt_u32 s{sT1}, 0x20000"); a(Op(f"s_cbranch_scc1 {lbl}", "branch"))
        for t in range(3): va(f"v_mov_b32 v{t}, 0xff800000", [f"v{t}"])
        raw(f"s_mov_b32 s{sT1}, 0"); a(Op("L_s1:", "label")); kload(); qk(False)
        for t in range(3):
            r = [f"v{sS(t, 0)+i}" for i in range(8)]
            for p in range(4): va(f"v_max3_f32 v{t}, v{t}, {r[2*p]}, {r[2*p+1]}", [f"v{t}"], [f"v{t}", r[2*p], r[2*p+1]])
        loop("L_s1")
        for t in range(3):
            m, tm = f"v{t}", "v3"
            for sw in ("16", "32"):
                va(f"v_mov_b32 {tm}, {m}", [tm], [m]); va(f"v_permlane{sw}_swap_b32 {m}, {tm}", [m, tm], [m, tm], kind="perm"); va(f"v_max_f32 {m}, {m}, {tm}", [m], [m, tm])
            for i in range(4): va(f"v_sub_f32 v{NM+4*t+i}, 0, {m}", [f"v{NM+4*t+i}"], [m])
        for r in range(ACC, LS + 12): va(f"v_mov_b32 v{r}, 0", [f"v{r}"])
        raw(f"s_mov_b32 s{sT1}, 0"); a(Op("L_s2:", "label")); kload()
        for hf in range(2):
            raw(f"s_add_u32 m0, s{sVO}, {hf*4096}", wr=["m0"])
            for i in range(4):
                a(Op(f"buffer_load_dwordx4 v{VD+(i&1)}, s[{RV}:{RV+3}], s{(sT1, sT2)[hf]} offen offset:{i*1024} lds", "dma", rd=["m0"], lds_wr=["SV"]))
        qk(True)
        for t in range(3):
            for i in range(8): va(f"v_exp_f32 v{sS(t,0)+i}, v{sS(t,0)+i}", [f"v{sS(t,0)+i}"], [f"v{sS(t,0)+i}"], kind="trans")
            for p in range(4): va(f"v_cvt_pk_bf16_f32 v{PP+4*t+p}, v{sS(t,0)+2*p}, v{sS(t,0)+2*p+1}", [f"v{PP+4*t+p}"], [f"v{sS(t,0)+2*p}", f"v{sS(t,0)+2*p+1}"])
        for T in range(8):
            for r in range(2):
                a(Op(f"ds_read_b64_tr_b16 {rng('a', 32+T*4+2*r, 2)}, v{232+T} offset:{r*4096}", "ds", rd=[f"v{232+T}"], wr=R("a", 32+T*4+2*r, 2), lds_rd=["SV"]))
        for t in range(3):
            a(mfma(("v", LS+4*t), ("v", ONES), ("v", PP+4*t), ("v", LS+4*t)))
            for T in range(8): a(mfma(("v", acc(t, T)), ("a", 32+T*4), ("v", PP+4*t), ("v", acc(t, T))))
        loop("L_s2")
        for t in range(3): s.oepi(t, L, check=False)
        a(Op("s_waitcnt vmcnt(0) lgkmcnt(0)", "wait")); a(Op("s_branch L_back", "branch"))
        L = insert_waits(L, hoist=False); L, _ = insert_nops(L)
        return L
    def stamp2(s, name): return [Op("@ST" + name, "label")] if s.c["stamps"] else []
    def stamp(s, name):
        if not s.c["stamps"]: return []
        k = len(s.names); s.names.append(name)
        return [Op(f"v_writelane_b32 v252, s{STAMP}, {k-1}", "valu", tag="st"), Op(f"{s.c.get('clk', 's_memrealtime')} s[{STAMP}:{STAMP+1}]", "salu", tag="st")]
    def build(s):
        c = s.c
        S1 = s.stream1(); P1 = schedule(S1)
        used = {s.blk[f"o{kk}"] for kk in range(16) if f"o{kk}" in s.blk}
        fr = [b_ for b_ in range(20) if b_ not in used]
        late = []
        for kk in s.wo_left: s.blk[f"o{kk}"] = fr.pop(); late.append(kk)
        assert all(kk >= 8 for kk in late)
        s.spare = fr[:4]
        SLOW = s.slowpath() if c["slow"] else []
        LATE = []
        for kk in late: s.D[f"o{kk}"] = s.dWO(LATE, kk)
        s.wo_hi = [o for kk in range(8, 16) for o in s.D[f"o{kk}"]]
        S2 = s.stream2(); P2 = schedule(S2, mlat=7)
        s.names = ["start"]
        hd = s.headgroups
        L = s.prologue() + sum(hd[:c["nhead1"]], []) + s.stamp("iss1") + s.prologue2() + s.stamp("pro2") + sum(hd[c["nhead1"]:], []) + s.stamp("issued") + [Op("@WARM", "label")] + s.stamp("warm")
        n = 0; nb = 0
        cm = lambda x: Op("; " + x, "label")
        marks = {0: "Q projection, k in steps of 64", 288: "last two steps q-tile by q-tile, first key block", **{408 + 51 * j: f"keys {32*j}..{32*j+31}: P V ; keys {32*j+32}..{32*j+63}: K Q^T" for j in range(1, 14)},
                 408 + 51 * 14: "last two key blocks; q-tiles finish one after the other, O is normalised and published"}
        for o in P1:
            if o.kind == "mfma":
                if n in marks: L.append(cm(marks[n]))
                if n == 384: L += s.stamp("att0")
                n += 1
                if n == 384 + 24 + 15 * 51 + 27: L.append(o); L += s.stamp("lastpv"); continue
            L.append(o)
            if o.kind == "bar":
                if not c.get("st2"): L += s.stamp(f"b{nb}")
                nb += 1
        L += s.stamp("epi")
        raw = lambda t, kind="salu", **k: Op(t, kind, **k)
        bb = Op("s_barrier", "bar"); bb.need_vm = [o for kk in range(8) for o in s.D[f"o{kk}"]]
        L += [raw("s_waitcnt lgkmcnt(0)", "wait"), bb]
        if c["slow"]:
            L += [Op(f"s_or_b64 s[{sCK}:{sCK+1}], s[{sCK}:{sCK+1}], s[{sCK+2}:{sCK+3}]", "salu", rd=R("s", sCK, 4)),
                  Op(f"s_or_b64 s[{sCK}:{sCK+1}], s[{sCK}:{sCK+1}], s[{sCK+4}:{sCK+5}]", "salu", rd=R("s", sCK, 6)),
                  Op("s_cbranch_scc1 L_slow", "branch"), Op("L_back:", "label")]
        L += LATE
        L += s.pre2 + [V(f"v_mov_b32 v6, s{sTAG}", ["v6"], []), V("v_mov_b32 v4, 0x7ffffff0", ["v4"], [])]
        L += [V("v_mov_b32 v7, 0", ["v7"], [])]
        n = 0
        marks = {0: "output projection: own head, while O travels", 96: "heads j^1, j^2, j^3 q-tile by q-tile as they arrive; finished partial tiles leave", 252: "remaining column tiles, own tile last"}
        for o in P2:
            if o.kind == "mfma":
                if n in marks: L.append(cm(marks[n]))
                if (n in c["st2"] if c.get("st2") else n % 48 == 0): L += s.stamp(f"h{n}" if c.get("st2") else f"h{n//48}")
                n += 1
            L.append(o)
        L += s.stamp("p2end") + [cm("stage 2: flag, fetch the partial tiles of whoever is ready, add them with 0/1 MFMAs, store")]
        for o in s.fin2: L += s.stamp(o.text[3:]) if o.text.startswith("@ST") else [o]
        if c["stamps"]:
            L += [raw("s_waitcnt vmcnt(0)", "wait")] + s.stamp("end") + [raw("s_waitcnt lgkmcnt(0)", "wait")] + s.stamp("x")[:1]
            s.names.pop()
            L += [raw(f"s_cmp_lg_u32 s{sW}, {c.get('stw', 0)}"), Op("s_cbranch_scc1 L_end", "branch"),
                  raw(f"s_mov_b32 s{RWS+2}, 0x10000000"),
                  raw(f"s_lshl_b32 s{sT1}, s2, 8"), raw(f"s_add_u32 s{sT1}, s{sT1}, {STAMP_OFF}"),
                  V(f"v_lshrrev_b32 v4, 2, v{VL16}", ["v4"], []), Op(f"buffer_store_dword v252, v4, s[{RWS}:{RWS+3}], s{sT1} offen", "store", rd=["v252"])]
        L += [Op("L_end:", "label"), Op("s_endpgm", "branch"), Op("L_codeend:", "label")]
        L = insert_waits(L)
        log = []; L, nn = insert_nops(L, log)
        s.nmain = len(L); L += [cm("out of line: stage-1 flag across XCDs, stage-1 wait")] + s.retry + [cm("out of line: true maximum over all keys (two passes)")] + SLOW
        s.log = log; s.L = L
        return L
    def pagewarm(s, L):
        import subprocess, re
        iw = next(i for i, o in enumerate(L) if o.text == "@WARM")
        if not s.c["pw"]: return L[:iw] + L[iw + 1:]
        body = L[iw + 1:s.nmain]
        src = '.amdgcn_target "amdgcn-amd-amdhsa--gfx950"\n.text\n' + "".join(o.text + "\n" for o in L if o.text != "@WARM")
        open("_sz.s", "w").write(src)
        subprocess.run(["clang", "-x", "assembler", "-target", "amdgcn-amd-amdhsa", "-mcpu=gfx950", "-c", "_sz.s", "-o", "_sz.o"], check=True)
        d = subprocess.run(["llvm-objdump", "-d", "--mcpu=gfx950", "_sz.o"], capture_output=True, text=True).stdout
        sz = [4 * len(m.group(1).split()) for m in re.finditer(r"// [0-9A-F]{12}: ([0-9A-F ]+)", d)]
        size = {}; p_ = 0
        for o in L:
            if o.kind == "label": continue
            n_ = sum(1 for x in o.text.split("\n") if not x.endswith(":")); size[o] = sum(sz[p_:p_ + n_]); p_ += n_
        assert p_ == len(sz), (p_, len(sz))
        out = []; pos = 0; npg = 0
        for i, o in enumerate(body):
            if pos >= 4096 * npg:
                ahead = pos; ok = out and out[-1].kind == "mfma"
                if not ok:
                    p = pos; later = False
                    for q in body[i:i + 16]:
                        p += size.get(q, 0)
                        if p > 4096 * npg + 56: break
                        if q.kind == "mfma": later = True; break
                    ok = not later
                if ok: out += [Op(f"L_pg{npg}:", "label"), Op(f"@PG{npg}", "branch")]; npg += 1; pos += 4
            out.append(o); pos += size.get(o, 0)
        for o in out:
            if o.text.startswith("@PG"):
                n = int(o.text[3:]); o.text = f"s_cbranch_execz " + (f"L_pg{n+4}" if n + 4 < npg else "L_warmed")
        hop = [Op("s_mov_b64 exec, 0", "salu")]
        for w in range(3): hop += [Op(f"s_cmp_eq_u32 s{sW}, {w}", "salu"), Op(f"s_cbranch_scc1 L_pg{w}", "branch")]
        hop += [Op("s_branch L_pg3", "branch"), Op("L_warmed:", "label"), Op("s_mov_b64 exec, -1", "salu"), Op("s_branch L_main", "branch"),
                Op(".p2align 12", "label"), Op("L_main:", "label")]
        n0 = s.nmain; s.nmain = iw + len(hop) + len(out)
        return L[:iw] + hop + out + L[n0:]
    def text(s):
        L = s.build(); L = s.L = s.pagewarm(L)
        hdr = open("standalone__mha_block_cached__near_ridge.s.ref").read().split("; Override")[0]
        t = hdr + DOC + ("; stamps: " + " ".join(s.names) + "\n" if s.c["stamps"] else "") + "; @launch grid=(256,1,1) block=(256,1,1) lds=163840\n"
        t += f'.amdgcn_target "amdgcn-amd-amdhsa--gfx950"\n.text\n.globl {KN}\n.p2align 8\n.type {KN},@function\n{KN}:\n'
        t += "".join((o.text if o.kind == "label" else "    " + o.text) + "\n" for o in L)
        t += (f'.section .rodata,"a"\n.p2align 6\n.amdhsa_kernel {KN}\n  .amdhsa_next_free_vgpr 512\n  .amdhsa_next_free_sgpr 102\n  .amdhsa_accum_offset 256\n'
              "  .amdhsa_group_segment_fixed_size 0\n  .amdhsa_kernarg_size 64\n  .amdhsa_user_sgpr_count 2\n  .amdhsa_user_sgpr_kernarg_segment_ptr 1\n"
              "  .amdhsa_system_sgpr_workgroup_id_x 1\n.end_amdhsa_kernel\n")
        return t

def summary(g):
    L = g.L[:g.nmain]; mi = [i for i, o in enumerate(L) if o.kind == "mfma"]; n1 = 1200
    return " ".join(f"{n} {estimate(L[a:b])}" for n, a, b in (("qproj", mi[0], mi[384]), ("attn", mi[384], mi[n1-1] + 1), ("epi", mi[n1-1], mi[n1]), ("r0", mi[n1], mi[n1+95] + 1), ("r123", mi[n1+96], mi[n1+383] + 1), ("tail", mi[n1+383], len(L))))
if __name__ == "__main__":
    out = sys.argv[1]; cfg = json.loads(sys.argv[2]) if len(sys.argv) > 2 else {}
    g = Gen(**cfg); t = g.text(); open(out, "w").write(t)
    print(" ".join(f"{n}@{gs[0]}" for n, gs, d in g.plan)); print("xrd", g.xrd, "blk", g.blk, "left", g.wo_left, "spare", g.spare)
    L = g.L[:g.nmain]; mi = [i for i, o in enumerate(L) if o.kind == "mfma"]
    n1 = 384 + 24 + 15 * 51 + 27
    print("ops", len(L), "mfma", len(mi), "nops", g.log[:40], len(g.log))
    print("est cycles: qproj", estimate(L[mi[0]:mi[384]]), "attn", estimate(L[mi[384]:mi[n1 - 1] + 1]), "attn tail", estimate(L[mi[n1-1]:mi[n1]]),
          "r0", estimate(L[mi[n1]:mi[n1+95] + 1]), "r1-3", estimate(L[mi[n1+96]:mi[-1] + 1]), "tail", estimate(L[mi[-1]:]))
```
